```python
import torch

def _softmax(x, axis=-1):
    return torch.softmax(x, dim=axis)
def _gelu(x):
    return torch.nn.functional.gelu(x, approximate="tanh")
def _silu(x):
    return torch.nn.functional.silu(x)
def _sigmoid(x):
    return torch.sigmoid(x)
def _layernorm(x, axis=-1, eps=1e-5):
    m = x.mean(dim=axis, keepdim=True)
    v = x.var(dim=axis, keepdim=True, unbiased=False)
    return (x - m) / torch.sqrt(v + eps)
def _scatter_add(tgt, idx, src, axis=0):
    return tgt.clone().index_add_(axis, idx, src)
def _segment_sum(src, seg, n):
    out = torch.zeros((n,) + src.shape[1:], dtype=src.dtype)
    return out.index_add_(0, seg, src)
def _pad(x, pw):
    flat = tuple(v for pair in reversed(pw) for v in pair)
    return torch.nn.functional.pad(x, flat)

kernel_name = 'gated_mix__mha_block__sliding_block__prompt'

def setup_inputs():

    _w = (lambda a: (lambda t: t.to(torch.bfloat16) if t.is_floating_point() else t)(torch.as_tensor(a)))
    def _A_setup():
        B, S, D, H = 1, 2048, 512, 32
        return {
            "x": _w((lambda *s: torch.randn(*s, dtype=torch.bfloat16) * 0.05)(B, S, D)),
            "wqkv": _w((lambda *s: torch.randn(*s, dtype=torch.bfloat16) * 1.6)(D, 3 * D)),
            "wo": _w((lambda *s: torch.randn(*s, dtype=torch.bfloat16) * 0.1)(D, D)),
        }
    _A_in = _A_setup()

    def _B_setup():
        B, S, D = 1, 2048, 512
        return {
            "x": _w((lambda *s: torch.randn(*s, dtype=torch.bfloat16) * 0.05)(B, S, D)),
            "wqkv": _w((lambda *s: torch.randn(*s, dtype=torch.bfloat16) * 1.6)(D, 3 * D)),
            "wo": _w((lambda *s: torch.randn(*s, dtype=torch.bfloat16) * 0.05)(D, D)),
        }
    _B_in = _B_setup()

    return {
        "A_x": _A_in["x"],
        "A_wqkv": _A_in["wqkv"],
        "A_wo": _A_in["wo"],
        "B_x": _B_in["x"],
        "B_wqkv": _B_in["wqkv"],
        "B_wo": _B_in["wo"],
        "gate_w": _w((lambda *s: torch.randn(*s, dtype=torch.bfloat16) * 0.05)(512) * 16.0),
    }

def reference(A_x, A_wqkv, A_wo, B_x, B_wqkv, B_wo, gate_w):
    def _A_ref(x, wqkv, wo):
        B, S, D = x.shape
        H = 32
        Dh = D // H
        qkv = (lambda x, *d: x.permute(*d))((x @ wqkv).reshape(B, S, 3, H, Dh), 2, 0, 3, 1, 4)
        q, k, v = qkv[0], qkv[1], qkv[2]
        scores = torch.einsum("bhqd,bhkd->bhqk", q, k) * (Dh ** -0.5)
        p = _softmax(scores, axis=-1)
        o = torch.einsum("bhqk,bhkd->bhqd", p, v)
        return (lambda x, *d: x.permute(*d))(o, 0, 2, 1, 3).reshape(B, S, D) @ wo

    def _B_ref(x, wqkv, wo):
        B, S, D = x.shape
        H = 32; Dh = D // H; W = 256
        qkv = (lambda x, *d: x.permute(*d))((x @ wqkv).reshape(B, S, 3, H, Dh), 2, 0, 3, 1, 4)
        q, k, v = qkv[0], qkv[1], qkv[2]
        scores = torch.einsum("bhqd,bhkd->bhqk", q, k) * (Dh ** -0.5)
        idx = torch.arange(S)
        mask = (idx[:, None] - idx[None, :] >= 0) & (idx[:, None] - idx[None, :] < W)
        scores = torch.where(mask[None, None], scores, -1e9)
        p = _softmax(scores, axis=-1)
        o = torch.einsum("bhqk,bhkd->bhqd", p, v)
        return (lambda x, *d: x.permute(*d))(o, 0, 2, 1, 3).reshape(B, S, D) @ wo

    x = A_x
    g = _sigmoid((x * gate_w).sum(-1, keepdims=True))
    a = _A_ref(x, A_wqkv, A_wo)
    b = _B_ref(x, B_wqkv, B_wo)
    return g * a + (1 - g) * b
```

```python
import re

class Asm:
    def __init__(self):
        self.lines = []
        self.nlabel = 0
    def __call__(self, s):
        for ln in s.split("\n"):
            ln = ln.strip()
            if not ln: continue
            if ln.endswith(":") or ln.startswith("."):
                self.lines.append(ln)
            else:
                self.lines.append("    " + ln)
    def c(self, s):
        self.lines.append("    ; " + s)
    def label(self, base):
        self.nlabel += 1
        return f"L_{base}_{self.nlabel}"
    def text(self):
        return "\n".join(self.lines) + "\n"

def vr(b, n):
    return f"v{b}" if n == 1 else f"v[{b}:{b+n-1}]"
def sr(b, n):
    return f"s{b}" if n == 1 else f"s[{b}:{b+n-1}]"

def srd(a, d, base, nbytes):
    a(f"s_mov_b32 s{d}, s{base}")
    a(f"s_mov_b32 s{d+1}, s{base+1}")
    a(f"s_mov_b32 s{d+2}, {hex(nbytes)}")
    a(f"s_mov_b32 s{d+3}, 0x00020000")

def kd(name, vgpr, sgpr, accum=None):
    if accum is None:
        accum = (vgpr + 3) // 4 * 4
    return f""".p2align 6
.amdhsa_kernel {name}
  .amdhsa_next_free_vgpr {vgpr}
  .amdhsa_next_free_sgpr {sgpr}
  .amdhsa_accum_offset {accum}
  .amdhsa_group_segment_fixed_size 0
  .amdhsa_kernarg_size 80
  .amdhsa_user_sgpr_count 2
  .amdhsa_user_sgpr_kernarg_segment_ptr 1
  .amdhsa_system_sgpr_workgroup_id_x 1
.end_amdhsa_kernel
"""

_reg = re.compile(r"(?<![\w.])([vas])(\d+)\b|(?<![\w.])([vas])\[(\d+):(\d+)\]|\b(vcc|exec|m0)\b")
def regs(op):
    out = set()
    for m in _reg.finditer(op):
        if m.group(1): out.add((m.group(1), int(m.group(2))))
        elif m.group(3):
            for i in range(int(m.group(4)), int(m.group(5)) + 1): out.add((m.group(3), i))
        else: out.add((m.group(6), 0))
    return out
TRANS = ("v_exp_", "v_log_", "v_rcp_", "v_rsq_", "v_sqrt_", "v_sin_", "v_cos_")
def split_ops(s):
    ops, depth, cur = [], 0, ""
    for ch in s:
        if ch == "[": depth += 1
        if ch == "]": depth -= 1
        if ch == "," and depth == 0:
            ops.append(cur.strip()); cur = ""
        else: cur += ch
    if cur.strip(): ops.append(cur.strip())
    return ops
def parse(line):
    line = line.split(";")[0].strip()
    if not line or line.endswith(":") or line.startswith("."): return None
    parts = line.split(None, 1)
    mn = parts[0]; ops = split_ops(parts[1]) if len(parts) > 1 else []
    d = dict(mn=mn, ops=ops, line=line, w=set(), r=set(), ws=1)
    if mn == "s_nop": d["ws"] = int(ops[0], 0) + 1
    isv = mn.startswith("v_")
    d["valu"] = isv and not mn.startswith("v_mfma") and not mn.startswith("v_smfmac")
    d["mfma"] = mn.startswith("v_mfma") or mn.startswith("v_smfmac")
    d["trans"] = mn.startswith(TRANS)
    d["vmem"] = mn.startswith(("buffer_", "global_", "flat_"))
    d["ds"] = mn.startswith("ds_")
    d["salu"] = mn.startswith("s_")
    if isv:
        d["w"] = regs(ops[0])
        for o in ops[1:]: d["r"] |= regs(o)
        if mn.startswith(("v_fmac", "v_dot2c", "v_smfmac", "v_pk_fmac")): d["r"] |= regs(ops[0])
        if mn.startswith("v_permlane") and "swap" in mn:
            d["w"] |= regs(ops[1]); d["r"] |= regs(ops[0])
        if mn.startswith(("v_add_co", "v_sub_co", "v_addc_co", "v_subb_co")):
            d["w"] |= regs(ops[1])
        if mn.startswith("v_cmpx"): d["w"].add(("exec", 0))
        if d["mfma"]:
            d["A"] = regs(ops[1]); d["B"] = regs(ops[2]); d["C"] = regs(ops[3]) if not mn.startswith("v_smfmac") else regs(ops[0])
            d["passes"] = 8 if "32x32" in mn else 4
    elif d["vmem"]:
        lds = " lds" in line or "load_lds" in mn
        if "load" in mn and not lds:
            d["w"] = regs(ops[0])
            for o in ops[1:]: d["r"] |= regs(o)
        else:
            for o in ops: d["r"] |= regs(o)
            if "store" in mn and ("x3" in mn or "x4" in mn):
                d["sdata"] = regs(ops[0]) if mn.startswith("buffer") else regs(ops[1])
        if lds: d["r"].add(("m0", 0))
        d["lds"] = lds
    elif d["ds"]:
        if "read" in mn or "permute" in mn or "swizzle" in mn:
            d["w"] = regs(ops[0])
            for o in ops[1:]: d["r"] |= regs(o)
        else:
            for o in ops: d["r"] |= regs(o)
    elif d["salu"]:
        if ops and not mn.startswith(("s_cmp", "s_cbranch", "s_branch", "s_waitcnt", "s_nop", "s_barrier", "s_sleep", "s_setprio", "s_bitcmp")):
            d["w"] = regs(ops[0])
            for o in ops[1:]: d["r"] |= regs(o)
    return d

def check_hazards(text, verbose=True):
    ins = [p for p in (parse(l) for l in text.split("\n")) if p]
    probs = []
    for j, c in enumerate(ins):
        dist = 0
        for i in range(j - 1, max(-1, j - 24), -1):
            p = ins[i]
            need = 0
            vw = {x for x in p["w"] if x[0] in "va"}
            sw = {x for x in p["w"] if x[0] in ("s", "vcc")}
            if p["valu"]:
                if c["mfma"] and vw & c["r"]: need = max(need, 2)
                if p["trans"] and c["valu"] and not c["trans"] and vw & c["r"]: need = max(need, 1)
                if c["mn"].startswith("v_permlane") and vw & c["r"]: need = max(need, 2)
                if c["mn"].startswith(("v_readfirstlane", "v_readlane")) and vw & c["r"]: need = max(need, 1)
                if "dpp" in c["line"] and vw & c["r"]: need = max(need, 2)
                if c["vmem"] and sw & c["r"]: need = max(need, 5)
                if c["valu"] and sw & c["r"]: need = max(need, 2)
                if p["mn"].startswith("v_dot") and (c["valu"] or c["mfma"] or c["vmem"] or c["ds"]) and vw & (c["r"] | c["w"]):
                    same = c["mn"] == p["mn"] and not (vw & (regs(c["ops"][1]) | regs(c["ops"][2])))
                    if not same: need = max(need, 3)
                if ("exec", 0) in p["w"] and c["mfma"]: need = max(need, 4)
            if p["mfma"]:
                ps = p["passes"]
                if c["mfma"]:
                    if vw & (c["A"] | c["B"]): need = max(need, {4: 8, 8: 12}[ps])
                    if vw & c["C"] and not (vw == c["C"] and c["passes"] == ps): need = max(need, {4: 6, 8: 10}[ps])
                    if vw & c["w"] and not (vw & c["C"]) : need = max(need, 0)
                elif (c["valu"] or c["vmem"] or c["ds"]) and vw & (c["r"] | c["w"]):
                    need = max(need, {4: 8, 8: 12}[ps])
                if c["valu"] and p["C"] & c["w"]: need = max(need, {4: 3, 8: 7}[ps])
            if p.get("sdata") and (c["valu"] or c["mfma"]) and p["sdata"] & c["w"]: need = max(need, 2)
            if p.get("sdata") and (c["vmem"] or c["ds"]) and p["sdata"] & c["w"]: need = max(need, 1)
            if p["salu"] and ("m0", 0) in p["w"] and c.get("lds"): need = max(need, 1)
            if need > dist:
                probs.append(f"need {need} have {dist}: [{p['line']}] -> [{c['line']}]")
            dist += p["ws"]
            if dist >= 20: break
    if verbose:
        for p in probs: print("HAZARD:", p)
    return probs
```

```python
import sys
from asmlib import *

QF = 0
KF = 4 << 20
VF = 8 << 20
OF = 12 << 20
GO = 16 << 20
WS_BYTES = 17 << 20
LOG2E = 1.4426950408889634
import struct
def f2u(x): return struct.unpack("<I", struct.pack("<f", x))[0]

def prologue(a, name):
    a(f".globl {name}\n.p2align 8\n.type {name},@function\n{name}:")

def k1(a):
    name = "qkv_kernel"
    prologue(a, name)
    X0 = 16; AQ = 144; AK = 160; AV = 176; WB = [192, 204]; GB = [216, 220]
    a("s_cmp_ge_u32 s2, 256")
    a("s_cbranch_scc1 L_k1_end")
    a("s_load_dwordx4 s[4:7], s[0:1], 0")
    a("s_load_dwordx2 s[24:25], s[0:1], 32")
    a("s_load_dwordx2 s[26:27], s[0:1], 48")
    a("s_load_dwordx2 s[28:29], s[0:1], 72")
    a("v_lshrrev_b32 v7, 6, v0")
    a("v_and_b32 v1, 63, v0")
    a("v_readfirstlane_b32 s30, v7")
    a("s_and_b32 s31, s2, 7")
    a("s_lshr_b32 s32, s2, 3")
    a("s_and_b32 s33, s31, 1")
    a("s_lshl_b32 s33, s33, 2")
    a("s_and_b32 s34, s32, 3")
    a("s_add_u32 s33, s33, s34")
    a("s_lshr_b32 s34, s31, 1")
    a("s_lshl_b32 s34, s34, 3")
    a("s_lshr_b32 s35, s32, 2")
    a("s_add_u32 s34, s34, s35")
    a("s_and_b32 s36, s34, 15")
    a("s_lshl_b32 s37, s33, 3")
    a("s_add_u32 s37, s37, s30")
    a("v_and_b32 v7, 31, v1")
    a("v_lshlrev_b32 v2, 10, v7")
    a("v_lshrrev_b32 v9, 5, v1")
    a("v_lshl_add_u32 v2, v9, 4, v2")
    a("s_lshl_b32 s38, s37, 15")
    a("v_add_u32 v2, s38, v2")
    a("v_lshrrev_b32 v7, 2, v1")
    a("s_lshl_b32 s38, s30, 4")
    a("v_add_u32 v7, s38, v7")
    a("v_mul_u32_u24 v3, 3072, v7")
    a("v_and_b32 v7, 3, v1")
    a("v_lshl_add_u32 v3, v7, 4, v3")
    a("s_lshl_b32 s38, s36, 6")
    a("v_add_u32 v3, s38, v3")
    a("v_bfe_u32 v10, v1, 2, 2")
    a("v_lshl_add_u32 v10, v9, 3, v10")
    a("v_lshlrev_b32 v4, 6, v10")
    a("v_bfe_u32 v10, v1, 4, 1")
    a("v_lshl_add_u32 v4, v10, 5, v4")
    a("v_lshl_add_u32 v4, v7, 3, v4")
    a("v_add_u32 v5, 0x10000, v4")
    a("v_lshlrev_b32 v6, 4, v9")
    a("v_add_u32 v6, 98304, v6")
    a("v_lshlrev_b32 v11, 4, v1")
    a("v_mov_b32 v8, 0")
    a("s_waitcnt lgkmcnt(0)")
    srd(a, 8, 4, 2 << 20)
    a("s_cmp_lt_u32 s34, 16")
    a("s_cselect_b32 s12, s6, s24")
    a("s_cselect_b32 s13, s7, s25")
    a(f"s_mov_b32 s14, {hex(512*1536*2)}")
    a("s_mov_b32 s15, 0x00020000")
    srd(a, 16, 28, WS_BYTES)
    srd(a, 20, 26, 1024)
    issue = []
    a("s_lshl_b32 s39, s30, 10")
    for g in range(4):
        for T in range(3):
            a(f"s_add_u32 s40, s39, {T*32768 + g*8192}")
            a("s_mov_b32 m0, s40")
            a(f"s_mov_b32 s41, {g*128*3072 + T*1024}")
            a("buffer_load_dwordx4 v3, s[12:15], s41 offen lds")
            issue.append(("W", g))
        if g == 0:
            a("s_mov_b32 m0, 98304")
            a("s_nop 0")
            a("buffer_load_dwordx4 v11, s[20:23], 0 offen lds")
            issue.append(("W", 0))
        for s in range(8*g, 8*g+8):
            a(f"buffer_load_dwordx4 {vr(X0+4*s,4)}, v2, s[8:11], 0 offen offset:{s*32}")
            issue.append(("X", s))
    total = len(issue)
    state = {"done": 0}
    def vmwait(tag):
        last = max(i for i, t in enumerate(issue) if t == tag)
        if last + 1 > state["done"]:
            state["done"] = last + 1
            a(f"s_waitcnt vmcnt({total - last - 1})")
    def reads(s):
        wb = WB[s & 1]
        for T in range(3):
            base = "v5" if T == 2 else "v4"
            off = (T if T < 2 else 0) * 32768 + s * 1024
            a(f"ds_read_b64_tr_b16 {vr(wb+4*T,2)}, {base} offset:{off}")
            a(f"ds_read_b64_tr_b16 {vr(wb+4*T+2,2)}, {base} offset:{off+256}")
        a(f"ds_read_b128 {vr(GB[s&1],4)}, v6 offset:{s*32}")
    vmwait(("W", 0)); a("s_barrier")
    reads(0)
    for s in range(32):
        if s + 1 < 32:
            if (s + 1) % 8 == 0:
                vmwait(("W", (s + 1) // 8)); a("s_barrier")
            reads(s + 1)
        vmwait(("X", s))
        a(f"s_waitcnt lgkmcnt({7 if s+1 < 32 else 0})")
        wb = WB[s & 1]; x = vr(X0 + 4*s, 4)
        cq = "0" if s == 0 else vr(AQ, 16); ck = "0" if s == 0 else vr(AK, 16); cv = "0" if s == 0 else vr(AV, 16)
        a(f"v_mfma_f32_32x32x16_bf16 {vr(AQ,16)}, {vr(wb,4)}, {x}, {cq}")
        for i in range(2): a(f"v_dot2c_f32_bf16 v8, v{X0+4*s+i}, v{GB[s&1]+i}")
        a(f"v_mfma_f32_32x32x16_bf16 {vr(AK,16)}, {vr(wb+4,4)}, {x}, {ck}")
        for i in range(2,4): a(f"v_dot2c_f32_bf16 v8, v{X0+4*s+i}, v{GB[s&1]+i}")
        a(f"v_mfma_f32_32x32x16_bf16 {vr(AV,16)}, {x}, {vr(wb+8,4)}, {cv}")
    a("s_lshl_b32 s42, s34, 17")
    a("s_lshl_b32 s43, s37, 10")
    a("s_add_u32 s42, s42, s43")
    a(f"s_add_u32 s43, s42, {QF}")
    a(f"s_add_u32 s44, s42, {QF + 65536}")
    a(f"s_add_u32 s45, s42, {KF}")
    a(f"s_add_u32 s46, s42, {KF + 65536}")
    a(f"s_add_u32 s47, s42, {VF}")
    a(f"s_mov_b32 s48, {hex(f2u(0.25*LOG2E))}")
    a("v_bfe_u32 v10, v1, 4, 1")
    a("v_lshlrev_b32 v12, 16, v10")
    a("v_lshl_add_u32 v12, v9, 8, v12")
    a("v_and_b32 v10, 15, v1")
    a("v_lshl_add_u32 v12, v10, 4, v12")
    a("s_nop 3")
    for i in range(16): a(f"v_mul_f32 v{AQ+i}, s48, v{AQ+i}")
    for i in range(8): a(f"v_cvt_pk_bf16_f32 v{16+i}, v{AQ+2*i}, v{AQ+2*i+1}")
    a("buffer_store_dwordx4 v[16:19], v11, s[16:19], s43 offen")
    a("buffer_store_dwordx4 v[20:23], v11, s[16:19], s44 offen")
    for i in range(8): a(f"v_cvt_pk_bf16_f32 v{24+i}, v{AK+2*i}, v{AK+2*i+1}")
    a("buffer_store_dwordx4 v[24:27], v11, s[16:19], s45 offen")
    a("buffer_store_dwordx4 v[28:31], v11, s[16:19], s46 offen")
    for i in range(8): a(f"v_cvt_pk_bf16_f32 v{32+i}, v{AV+2*i}, v{AV+2*i+1}")
    a("buffer_store_dwordx4 v[32:35], v12, s[16:19], s47 offen")
    a("buffer_store_dwordx4 v[36:39], v12, s[16:19], s47 offen offset:512")
    a("s_cmp_lg_u32 s34, 0")
    a("s_cbranch_scc1 L_k1_end")
    a("v_mov_b32 v13, v8")
    a("s_nop 1")
    a("v_permlane32_swap_b32 v8, v13")
    a("s_nop 1")
    a("v_add_f32 v8, v8, v13")
    a(f"v_mul_f32 v8, {hex(f2u(-LOG2E))}, v8")
    a("v_exp_f32 v8, v8")
    a("s_nop 0")
    a("v_add_f32 v8, 1.0, v8")
    a("v_rcp_f32 v8, v8")
    a("v_and_b32 v7, 31, v1")
    a("v_lshlrev_b32 v7, 2, v7")
    a("s_lshl_b32 s43, s37, 7")
    a(f"s_add_u32 s43, s43, {GO}")
    a("buffer_store_dword v8, v7, s[16:19], s43 offen")
    a("L_k1_end:")
    a("s_endpgm")
    return kd(name, 224, 56)

QA = 8; QB = 12; KB = [16, 20]; VB = [24, 32]; SB = [40, 56]; P = 72; O = 80; CF = 96; CD = 112; CR = 128
NEGINF = 0xff800000

def tile_step(a, idx, Q, Cnext, kread, vread, do_qk=True, pv1prev=True, o_init_pv1=False, o_init_pv0=False, pre_qk=None):
    S = SB[idx & 1]; Sn = SB[(idx + 1) & 1]
    Vc = VB[idx & 1]; Vp = VB[(idx + 1) & 1]
    def E(i): a(f"v_exp_f32 v{S+i}, v{S+i}")
    def C(i): a(f"v_cvt_pk_bf16_f32 v{P+i}, v{S+2*i}, v{S+2*i+1}")
    n = 0
    if kread:
        a(f"ds_read_b128 {vr(KB[idx&1],4)}, {kread[0]} offset:{kread[1]}"); n += 1
    E(0); E(1)
    if pv1prev:
        a(f"v_mfma_f32_32x32x16_bf16 {vr(O,16)}, {vr(Vp+4,4)}, {vr(P+4,4)}, {vr(O,16)}")
    if vread:
        a("s_mov_b64 exec, s[40:41]")
        a(f"ds_read_b128 {vr(Vp,4)}, {vread[0]} offset:{vread[1]}")
        a(f"ds_read_b128 {vr(Vp+4,4)}, {vread[0]} offset:{vread[1]+512}")
        a("s_mov_b64 exec, -1")
        n += 2
    E(2); E(3); C(0); E(4); E(5); C(1)
    a(f"s_waitcnt lgkmcnt({n})")
    if pre_qk: pre_qk()
    if do_qk:
        a(f"v_mfma_f32_32x32x16_bf16 {vr(Sn,16)}, {vr(KB[(idx+1)&1],4)}, {vr(Q,4)}, {vr(Cnext,16)}")
    E(6); E(7); C(2); E(8); E(9); C(3); E(10); E(11)
    a(f"v_mfma_f32_32x32x16_bf16 {vr(O,16)}, {vr(Vc,4)}, {vr(P,4)}, {'0' if o_init_pv0 else vr(O,16)}")
    C(4); E(12); E(13); C(5); E(14); E(15); C(6); C(7)

def finalize(a, lastidx, gate_reg, flag_sgpr, fb_label, sofs):
    Vc = VB[lastidx & 1]
    a("s_nop 1")
    a(f"v_mfma_f32_32x32x16_bf16 {vr(O,16)}, {vr(Vc+4,4)}, {vr(P+4,4)}, {vr(O,16)}")
    a("s_nop 11")
    a(f"v_rcp_f32 v5, v{O+8}")
    a(f"v_cmp_gt_f32 s[44:45], s42, v{O+8}")
    a(f"v_mul_f32 v5, {gate_reg}, v5")
    for i in range(8): a(f"v_mul_f32 v{O+i}, v5, v{O+i}")
    a(f"v_add_f32 v6, |v{O}|, |v{O+1}|")
    for i in range(2, 8): a(f"v_add_f32 v6, v6, |v{O+i}|")
    a("v_cmp_gt_f32 s[46:47], s43, v6")
    for i in range(4): a(f"v_cvt_pk_bf16_f32 v{P+i}, v{O+2*i}, v{O+2*i+1}")
    a("s_and_b64 s[44:45], s[44:45], s[46:47]")
    a("s_cmp_eq_u64 s[44:45], -1")
    a(f"s_cselect_b32 s44, 1, {flag_sgpr}")
    a("s_cmp_eq_u32 s44, 0")
    a(f"s_cbranch_scc1 {fb_label}")
    a(f"buffer_store_dwordx4 {vr(P,4)}, v2, s[16:19], {sofs} offen")
    a("s_nop 1")

def crossmax(a, reg, tmp):
    a(f"v_mov_b32 v{tmp}, v{reg}")
    a("s_nop 1")
    a(f"v_permlane32_swap_b32 v{reg}, v{tmp}")
    a("s_nop 1")
    a(f"v_max_f32 v{reg}, v{reg}, v{tmp}")

def k2(a, force_fb=False):
    name = "attn_kernel"
    prologue(a, name)
    NA = 144; NB = 145; GA = 146; GBr = 147; VKA = 148; VVA = 149; VKB = 150; VVB = 151; NI = 152; NBF = 153; MX = 154
    a("s_cmp_ge_u32 s2, 256")
    a("s_cbranch_scc1 L_k2_end")
    a("s_load_dwordx2 s[28:29], s[0:1], 72")
    a("v_lshrrev_b32 v7, 6, v0")
    a("v_and_b32 v1, 63, v0")
    a("v_readfirstlane_b32 s30, v7")
    a("s_and_b32 s31, s2, 7")
    a("s_lshr_b32 s32, s2, 3")
    a("s_lshl_b32 s33, s31, 2")
    a("s_and_b32 s34, s32, 3")
    a("s_add_u32 s33, s33, s34")
    a("s_lshr_b32 s34, s32, 2")
    a("s_lshl_b32 s35, s34, 3")
    a("s_add_u32 s36, s35, s30")
    a("v_lshlrev_b32 v2, 4, v1")
    a("s_lshl_b32 s37, s33, 16")
    a("s_lshl_b32 s38, s36, 10")
    a("s_add_u32 s38, s38, s37")
    a("v_and_b32 v7, 31, v1")
    a("v_lshlrev_b32 v7, 2, v7")
    a("s_waitcnt lgkmcnt(0)")
    srd(a, 16, 28, WS_BYTES)
    a(f"s_add_u32 s39, s38, {QF + 32*65536}")
    a(f"buffer_load_dwordx4 {vr(QB,4)}, v2, s[16:19], s39 offen")
    a(f"s_add_u32 s39, s38, {KF + 32*65536}")
    a(f"buffer_load_dwordx4 {vr(SB[0],4)}, v2, s[16:19], s39 offen")
    a(f"s_add_u32 s39, s38, {QF}")
    a(f"buffer_load_dwordx4 {vr(QA,4)}, v2, s[16:19], s39 offen")
    a(f"s_add_u32 s39, s38, {KF}")
    a(f"buffer_load_dwordx4 {vr(SB[0]+4,4)}, v2, s[16:19], s39 offen")
    a("s_lshl_b32 s39, s36, 7")
    a(f"s_add_u32 s39, s39, {GO}")
    a(f"buffer_load_dword v{GA}, v7, s[16:19], s39 offen")
    a("s_lshl_b32 s48, s30, 10")
    a("s_sub_i32 s49, s36, 8")
    a("s_max_i32 s49, s49, 0")
    a("s_lshl_b32 s49, s49, 10")
    a("s_add_u32 s49, s49, s37")
    for (src, gbase, lbase) in ((38, KF + 32*65536, 131072 + 8192), (38, VF + 32*65536, 147456 + 8192),
                                (49, KF + 32*65536, 131072), (49, VF + 32*65536, 147456)):
        a(f"s_add_u32 s50, s48, {lbase}")
        a("s_mov_b32 m0, s50")
        a(f"s_add_u32 s39, s{src}, {gbase}")
        a("buffer_load_dwordx4 v2, s[16:19], s39 offen lds")
    a("s_add_u32 s51, s48, s37")
    for i in range(8):
        for (gbase, lbase) in ((KF, 0), (VF, 65536)):
            a(f"s_add_u32 s50, s48, {lbase + i*8192}")
            a("s_mov_b32 m0, s50")
            a(f"s_add_u32 s39, s51, {gbase + i*8192}")
            a("buffer_load_dwordx4 v2, s[16:19], s39 offen lds")
    a("s_mov_b32 s40, 0x0000ffff")
    a("s_mov_b32 s41, 0x0000ffff")
    a(f"s_mov_b32 s42, {hex(f2u(2.0**64) if not force_fb else f2u(0.5))}")
    a("s_mov_b32 s43, 0x7f800000")
    a("s_mov_b32 s52, 0")
    a("s_mov_b32 s53, 0")
    a("v_lshrrev_b32 v5, 5, v1")
    a("v_lshlrev_b32 v5, 8, v5")
    a("v_and_b32 v6, 15, v1")
    a("v_lshl_add_u32 v3, v6, 4, v5")
    a(f"s_add_u32 s50, s48, 131072")
    a(f"v_add_u32 v{VKB}, s50, v2")
    a(f"s_add_u32 s50, s48, 147456")
    a(f"v_add_u32 v{VVB}, s50, v3")
    a(f"v_mov_b32 v{NI}, {hex(NEGINF)}")
    a("v_mov_b32 v5, 0x3f803f80")
    a("v_cndmask_b32 v5, v5, 0, s[40:41]")
    for i in range(16): a(f"v_mov_b32 v{VB[0]+i}, v5")
    a("s_waitcnt vmcnt(20)")
    a(f"v_mov_b32 v{NB}, 0")
    a(f"v_mov_b32 v{NA}, 0")
    for i in range(4): a(f"v_dot2c_f32_bf16 v{NB}, v{QB+i}, v{SB[0]+i}")
    a("s_nop 2")
    for i in range(4): a(f"v_dot2c_f32_bf16 v{NA}, v{QA+i}, v{SB[0]+4+i}")
    a(f"v_sub_f32 v{GBr}, 1.0, v{GA}")
    a(f"v_mov_b32 v5, v{NB}")
    a("s_nop 1")
    a(f"v_mov_b32 v6, v{NA}")
    a(f"v_permlane32_swap_b32 v{NB}, v5")
    a("s_nop 0")
    a(f"v_permlane32_swap_b32 v{NA}, v6")
    a("s_nop 1")
    a(f"v_add_f32 v{NB}, -v{NB}, -v5")
    a(f"v_add_f32 v{NA}, -v{NA}, -v6")
    a("s_waitcnt vmcnt(16)")
    a("s_barrier")
    a("L_B_start:")
    a("s_cmp_ge_u32 s36, 8")
    a("s_cselect_b64 s[44:45], -1, 0")
    a(f"ds_read_b128 {vr(KB[0],4)}, v{VKB} offset:{8*1024}")
    a(f"ds_read_b128 {vr(KB[1],4)}, v{VKB} offset:{7*1024}")
    a("s_mov_b64 exec, s[40:41]")
    a(f"ds_read_b128 {vr(VB[0],4)}, v{VVB} offset:{8*1024}")
    a(f"ds_read_b128 {vr(VB[0]+4,4)}, v{VVB} offset:{8*1024+512}")
    a("s_mov_b64 exec, -1")
    a(f"v_cndmask_b32 v{NBF}, v{NI}, v{NB}, s[44:45]")
    for r in range(16):
        i0 = 8*(r >> 2) + (r & 3)
        sp = 44 + 2*(r & 1)
        a(f"s_mov_b32 s{sp}, {hex((0xffffffff << i0) & 0xffffffff)}")
        a(f"s_mov_b32 s{sp+1}, {hex((0xffffffff << (i0+4)) & 0xffffffff)}")
        a(f"v_cndmask_b32 v{CD+r}, v{NI}, v{NB}, s[{sp}:{sp+1}]")
        a(f"v_cndmask_b32 v{CR+r}, v{NBF}, v{NI}, s[{sp}:{sp+1}]")
    for r in range(16): a(f"v_mov_b32 v{CF+r}, v{NB}")
    a("s_waitcnt lgkmcnt(3)")
    a(f"v_mfma_f32_32x32x16_bf16 {vr(SB[0],16)}, {vr(KB[0],4)}, {vr(QB,4)}, {vr(CD,16)}")
    a("s_nop 11")
    for n in range(9):
        i = 8 - n
        kread = (f"v{VKB}", (i-2)*1024) if i - 2 >= 0 else None
        vread = (f"v{VVB}", (i-1)*1024) if i - 1 >= 0 else None
        def pre(i=i):
            if i - 1 >= 1:
                lb = a.label("bskip")
                a(f"s_cmp_lg_u32 s36, {8-i}")
                a(f"s_cbranch_scc1 {lb}")
                a("s_nop 7")
                for r in range(16): a(f"v_mov_b32 v{CF+r}, v{NI}")
                a("s_nop 1")
                a(f"{lb}:")
        tile_step(a, n, QB, CF if i - 1 >= 1 else CR, kread, vread, do_qk=(i >= 1), pv1prev=(n > 0), o_init_pv0=(n == 0), pre_qk=pre)
    a(f"s_add_u32 s39, s38, {OF + 32*65536}")
    finalize(a, 8, f"v{GBr}", "s52", "L_B_fb", "s39")
    a("s_waitcnt vmcnt(1)")
    a("s_barrier")
    a("L_A_start:")
    a(f"v_mov_b32 v{VKA}, v2")
    a(f"v_add_u32 v{VVA}, 65536, v3")
    a(f"ds_read_b128 {vr(KB[0],4)}, v2 offset:0")
    a(f"ds_read_b128 {vr(KB[1],4)}, v2 offset:1024")
    a("s_mov_b64 exec, s[40:41]")
    a(f"ds_read_b128 {vr(VB[0],4)}, v{VVA} offset:0")
    a(f"ds_read_b128 {vr(VB[0]+4,4)}, v{VVA} offset:512")
    a("s_mov_b64 exec, -1")
    for r in range(16): a(f"v_mov_b32 v{CF+r}, v{NA}")
    for r in range(16): a(f"v_mov_b32 v{O+r}, 0")
    for r in range(4): a(f"v_mov_b32 v{P+4+r}, 0")
    a("s_mov_b32 s54, 8")
    a("s_waitcnt lgkmcnt(3)")
    a(f"v_mfma_f32_32x32x16_bf16 {vr(SB[0],16)}, {vr(KB[0],4)}, {vr(QA,4)}, {vr(CF,16)}")
    a("s_nop 11")
    a(".p2align 3")
    a("L_A_loop:")
    for n in range(8):
        tile_step(a, n, QA, CF, (f"v{VKA}", (n+2)*1024), (f"v{VVA}", (n+1)*1024))
    a(f"v_add_u32 v{VKA}, 8192, v{VKA}")
    a(f"v_add_u32 v{VVA}, 8192, v{VVA}")
    a("s_sub_u32 s54, s54, 1")
    a("s_cmp_lg_u32 s54, 0")
    a("s_cbranch_scc1 L_A_loop")
    a("s_waitcnt lgkmcnt(0)")
    a(f"s_add_u32 s39, s38, {OF}")
    finalize(a, 7, f"v{GA}", "s53", "L_A_fb", "s39")
    a("L_k2_end:")
    a("s_endpgm")
    def maxtile(Q, C, addr, off):
        a(f"ds_read_b128 {vr(KB[0],4)}, {addr} offset:{off}")
        a("s_waitcnt lgkmcnt(0)")
        a(f"v_mfma_f32_32x32x16_bf16 {vr(SB[0],16)}, {vr(KB[0],4)}, {vr(Q,4)}, {vr(C,16)}")
        a("s_nop 15")
        for i in range(8): a(f"v_max3_f32 v{MX}, v{SB[0]+2*i}, v{SB[0]+2*i+1}, v{MX}")
    a("L_A_fb:")
    a("s_mov_b32 s53, 1")
    a(f"v_mov_b32 v{MX}, v{NI}")
    a(f"v_mov_b32 v{VKA}, v2")
    a("s_mov_b32 s54, 64")
    a("L_A_fb_loop:")
    maxtile(QA, CF, f"v{VKA}", 0)
    a(f"v_add_u32 v{VKA}, 1024, v{VKA}")
    a("s_sub_u32 s54, s54, 1")
    a("s_cmp_lg_u32 s54, 0")
    a("s_cbranch_scc1 L_A_fb_loop")
    crossmax(a, MX, 5)
    a(f"v_sub_f32 v{NA}, v{NA}, v{MX}")
    a("s_branch L_A_start")
    a("L_B_fb:")
    a("s_mov_b32 s52, 1")
    a(f"v_mov_b32 v{MX}, v{NI}")
    for r in range(16): a(f"v_mov_b32 v{CF+r}, v{NB}")
    maxtile(QB, CD, f"v{VKB}", 8*1024)
    maxtile(QB, CR, f"v{VKB}", 0)
    a("s_min_u32 s54, s36, 7")
    a(f"v_add_u32 v5, {7*1024}, v{VKB}")
    a("L_B_fb_loop:")
    a("s_cmp_eq_u32 s54, 0")
    a("s_cbranch_scc1 L_B_fb_done")
    maxtile(QB, CF, "v5", 0)
    a("v_subrev_u32 v5, 1024, v5")
    a("s_sub_u32 s54, s54, 1")
    a("s_branch L_B_fb_loop")
    a("L_B_fb_done:")
    crossmax(a, MX, 5)
    a(f"v_sub_f32 v{NB}, v{NB}, v{MX}")
    a("s_branch L_B_start")
    return kd(name, 156, 64)

def k3(a):
    name = "oproj_kernel"
    prologue(a, name)
    OFR = 16; ACC = [80, 96]; WB = [112, 120]
    a("s_cmp_ge_u32 s2, 256")
    a("s_cbranch_scc1 L_k3_end")
    a("s_load_dwordx2 s[4:5], s[0:1], 16")
    a("s_load_dwordx2 s[6:7], s[0:1], 40")
    a("s_load_dwordx2 s[24:25], s[0:1], 56")
    a("s_load_dwordx2 s[28:29], s[0:1], 72")
    a("v_lshrrev_b32 v7, 6, v0")
    a("v_and_b32 v1, 63, v0")
    a("v_readfirstlane_b32 s30, v7")
    a("s_and_b32 s31, s2, 7")
    a("s_lshr_b32 s32, s2, 3")
    a("s_lshl_b32 s33, s31, 2")
    a("s_and_b32 s34, s32, 3")
    a("s_add_u32 s33, s33, s34")
    a("s_lshr_b32 s34, s32, 2")
    a("s_and_b32 s35, s30, 1")
    a("s_lshr_b32 s36, s30, 1")
    a("s_lshl_b32 s37, s33, 1")
    a("s_add_u32 s37, s37, s35")
    a("v_lshlrev_b32 v2, 4, v1")
    a("v_lshrrev_b32 v7, 3, v1")
    a("v_lshlrev_b32 v3, 10, v7")
    a("v_bfe_u32 v8, v1, 4, 1")
    a("v_lshlrev_b32 v8, 2, v8")
    a("v_and_b32 v9, 7, v1")
    a("v_xor_b32 v8, v8, v9")
    a("v_lshl_add_u32 v3, v8, 4, v3")
    a("v_lshrrev_b32 v9, 5, v1")
    a("v_bfe_u32 v10, v1, 2, 2")
    a("v_lshl_add_u32 v11, v9, 2, v10")
    a("v_lshlrev_b32 v4, 7, v11")
    a("v_and_b32 v11, 1, v1")
    a("v_lshl_add_u32 v4, v11, 5, v4")
    a("v_bfe_u32 v11, v1, 4, 1")
    a("v_lshl_add_u32 v4, v11, 4, v4")
    a("v_bfe_u32 v11, v1, 1, 1")
    a("v_lshl_add_u32 v4, v11, 3, v4")
    a("s_lshl_b32 s38, s36, 15")
    a("v_add_u32 v4, s38, v4")
    a("v_bfe_u32 v11, v1, 3, 1")
    a("v_lshlrev_b32 v11, 6, v11")
    a("v_xor_b32 v12, 64, v11")
    a("v_add_u32 v5, v4, v12")
    a("v_add_u32 v4, v4, v11")
    a("s_waitcnt lgkmcnt(0)")
    a("s_cmp_lt_u32 s36, 2")
    a("s_cselect_b32 s12, s4, s6")
    a("s_cselect_b32 s13, s5, s7")
    a(f"s_mov_b32 s14, {hex(512*512*2)}")
    a("s_mov_b32 s15, 0x00020000")
    srd(a, 16, 28, WS_BYTES)
    srd(a, 20, 24, 2 << 20)
    a("s_and_b32 s39, s36, 1")
    a("s_lshl_b32 s39, s39, 18")
    a("s_lshl_b32 s40, s35, 13")
    a("s_add_u32 s39, s39, s40")
    a("s_lshl_b32 s40, s34, 7")
    a("s_add_u32 s39, s39, s40")
    a("s_lshl_b32 s40, s35, 10")
    a("s_add_u32 s40, s40, s38")
    a("s_lshl_b32 s41, s36, 20")
    a("s_lshl_b32 s42, s37, 10")
    a("s_add_u32 s41, s41, s42")
    a(f"s_add_u32 s41, s41, {OF}")
    issue = []
    for i in range(16):
        a(f"s_add_u32 s43, s40, {i*2048}")
        a("s_mov_b32 m0, s43")
        a(f"s_add_u32 s44, s39, {i*16384}")
        a("buffer_load_dwordx4 v3, s[12:15], s44 offen lds")
        issue.append(("W", i // 4))
        a(f"s_add_u32 s45, s41, {i*65536}")
        a(f"buffer_load_dwordx4 {vr(OFR+4*i,4)}, v2, s[16:19], s45 offen")
        issue.append(("X", i))
    total = len(issue)
    state = {"done": 0}
    def vmwait(tag):
        last = max(i for i, t in enumerate(issue) if t == tag)
        if last + 1 > state["done"]:
            state["done"] = last + 1
            a(f"s_waitcnt vmcnt({total - last - 1})")
    def reads(s):
        wb = WB[s & 1]
        for ct in range(2):
            a(f"ds_read_b64_tr_b16 {vr(wb+4*ct,2)}, v{4+ct} offset:{s*2048}")
            a(f"ds_read_b64_tr_b16 {vr(wb+4*ct+2,2)}, v{4+ct} offset:{s*2048+1024}")
    vmwait(("W", 0)); a("s_barrier")
    reads(0)
    for s in range(16):
        if s + 1 < 16:
            if (s + 1) % 4 == 0:
                vmwait(("W", (s + 1) // 4)); a("s_barrier")
            reads(s + 1)
        vmwait(("X", s))
        a(f"s_waitcnt lgkmcnt({4 if s+1 < 16 else 0})")
        for ct in range(2):
            a(f"v_mfma_f32_32x32x16_bf16 {vr(ACC[ct],16)}, {vr(WB[s&1]+4*ct,4)}, {vr(OFR+4*s,4)}, {'0' if s == 0 else vr(ACC[ct],16)}")
    a("s_lshl_b32 s43, s35, 15")
    a("s_lshl_b32 s44, s36, 11")
    a("s_add_u32 s44, s44, s43")
    a("v_add_u32 v6, s44, v2")
    a("s_lshl_b32 s44, s36, 13")
    a("s_add_u32 s44, s44, s43")
    a("v_add_u32 v7, s44, v2")
    a("v_and_b32 v8, 31, v1")
    a("v_lshlrev_b32 v8, 10, v8")
    a("v_lshl_add_u32 v8, v9, 5, v8")
    a("s_lshl_b32 s43, s37, 15")
    a("s_lshl_b32 s44, s34, 7")
    a("s_add_u32 s43, s43, s44")
    a("s_lshr_b32 s44, s36, 1")
    a("s_lshl_b32 s44, s44, 6")
    a("s_add_u32 s43, s43, s44")
    a("s_and_b32 s44, s36, 1")
    a("s_lshl_b32 s44, s44, 4")
    a("s_add_u32 s43, s43, s44")
    a("s_barrier")
    for owner in range(4):
        for q in range(2):
            a(f"ds_write_b128 v6, {vr(ACC[owner>>1] + 8*(owner&1) + 4*q, 4)} offset:{owner*8192 + q*1024}")
    a("s_waitcnt lgkmcnt(0)")
    a("s_barrier")
    for src in range(4):
        for q in range(2):
            a(f"ds_read_b128 {vr(16 + src*8 + 4*q, 4)}, v7 offset:{src*2048 + q*1024}")
    a("s_waitcnt lgkmcnt(4)")
    for i in range(8): a(f"v_add_f32 v{16+i}, v{16+i}, v{24+i}")
    a("s_waitcnt lgkmcnt(0)")
    for i in range(8): a(f"v_add_f32 v{32+i}, v{32+i}, v{40+i}")
    for i in range(8): a(f"v_add_f32 v{16+i}, v{16+i}, v{32+i}")
    for i in range(4): a(f"v_cvt_pk_bf16_f32 v{48+i}, v{16+2*i}, v{17+2*i}")
    a("buffer_store_dwordx4 v[48:51], v8, s[20:23], s43 offen")
    a("L_k3_end:")
    a("s_endpgm")
    return kd(name, 128, 56)

def main(out, force_fb=False):
    hdr = open("gated_mix__mha_block__sliding_block__prompt.s.ref").read().split("\n")
    hdr = [l for l in hdr if l.startswith(";") and "@launch" not in l and "Override" not in l and "grid=ceil" not in l]
    a = Asm()
    kds = [k1(a), k2(a, force_fb), k3(a)]
    body = a.text()
    check_hazards(body)
    txt = "\n".join(hdr) + "\n"
    txt += "; @launch kernel=qkv_kernel grid=(256,1,1) block=(512,1,1) lds=99328\n"
    txt += "; @launch kernel=attn_kernel grid=(256,1,1) block=(512,1,1) lds=163840\n"
    txt += "; @launch kernel=oproj_kernel grid=(256,1,1) block=(512,1,1) lds=131072\n"
    txt += '.amdgcn_target "amdgcn-amd-amdhsa--gfx950"\n.text\n' + body
    txt += '.section .rodata,"a"\n' + "".join(kds)
    open(out, "w").write(txt)

if __name__ == "__main__":
    main(sys.argv[1], force_fb=("fb" in sys.argv[2:]))
```

```python
import sys, struct
from asmlib import *

QF = 0
GO = (16 << 20) + 0x10000
KV = 4 << 20
OF = 12 << 20
FL = 16 << 20
FA = FL
FB = FL + 0x1000
FOA = FL + 0x2000
FOB = FL + 0x3000
TS = 20 << 20
WS_BYTES = 24 << 20
LOG2E = 1.4426950408889634
NEGINF = 0xff800000
def f2u(x): return struct.unpack("<I", struct.pack("<f", x))[0]
NAME = "gated_mix__mha_block__sliding_block__prompt_kernel"

class Opt:
    stamps = False; force_fb = False; prio = True; codepf = True; pubz = 20; D = 4; wopf = True; n1 = 3; pr1 = 2; pr0 = 1; shp = 1; slp = 2; hold = 1; tlb = 0; pubo = 3; outf = 0
O_ = Opt()
sc = "sc1"

GW_LDS = 153600
MERGE_LDS = 131072; MBLK = 2176
CTL = 163840 - 64
SPIN = 1 << 18

class Stamper:
    def __init__(self, a): self.a = a; self.n = 0; self.kid = 0
    def __call__(self):
        if not O_.stamps: return
        assert self.n < 13
        self.a(f"s_memtime s[{72+2*self.n}:{73+2*self.n}]")
        if self.n == 0: self.a("s_memrealtime s[98:99]")
        self.a("s_waitcnt lgkmcnt(0)")
        self.n += 1
    def flush(self):
        if not O_.stamps: return
        a = self.a
        a("s_memrealtime s[100:101]")
        a("s_lshl_b32 s62, s2, 3")
        a("s_add_u32 s62, s62, s52")
        a("s_lshl_b32 s62, s62, 6")
        a(f"s_add_u32 s62, s62, {TS}")
        a("v_mov_b32 v250, 0")
        a("s_waitcnt lgkmcnt(0)")
        for i, sg in enumerate([f"s{72+2*i}" for i in range(self.n)] + ["-1"]*(13-self.n) + [str(self.n), "s98", "s100"]):
            a(f"v_mov_b32 v252, {sg}")
            a(f"buffer_store_dword v252, v250, s[16:19], s62 offen offset:{4*i}")
        a("s_waitcnt vmcnt(0)")

class VM:
    def __init__(self, a): self.a = a; self.q = []; self.done = 0
    def issue(self, tag): self.q.append(tag)
    def wait(self, tag):
        last = max(i for i, t in enumerate(self.q) if t == tag)
        if last + 1 > self.done:
            self.done = last + 1
            n = len(self.q) - last - 1
            assert n < 64
            self.a(f"s_waitcnt vmcnt({n})")

def lds_count(a, cnt_off, target=None, flag_soff_code=None, inc=1):
    a(f"v_mov_b32 v250, {CTL}")
    a(f"v_mov_b32 v251, {inc}")
    a("s_mov_b64 exec, 1")
    if flag_soff_code is None:
        a(f"ds_add_u32 v250, v251 offset:{cnt_off}")
    else:
        lab = a.label("pub")
        a(f"ds_add_rtn_u32 v251, v250, v251 offset:{cnt_off}")
        a("v_mov_b32 v252, s30")
        a("v_mov_b32 v253, s31")
        a("s_waitcnt lgkmcnt(0)")
        a("v_readfirstlane_b32 s59, v251")
        a("v_mov_b32 v250, 0")
        a("s_and_b32 s59, s59, 0xff")
        a(f"s_cmp_lg_u32 s59, {target-1}")
        a(f"s_cbranch_scc1 {lab}")
        flag_soff_code()
        a("buffer_store_dwordx2 v[252:253], v250, s[16:19], s59 offen sc1")
        a(f"{lab}:")
    a("s_mov_b64 exec, -1")

def lds_wait(a, cnt_off, target, four=False):
    lab = a.label("lw")
    if four:
        a("v_and_b32 v250, 3, v1")
        a("v_lshlrev_b32 v250, 2, v250")
        a(f"v_add_u32 v250, {CTL}, v250")
    else:
        a(f"v_mov_b32 v250, {CTL}")
    a(f"s_mov_b32 s59, {SPIN*4}")
    a(f"{lab}:")
    a(f"ds_read_b32 v251, v250 offset:{cnt_off}")
    a("s_waitcnt lgkmcnt(0)")
    a(f"v_cmp_gt_u32 vcc, {target}, v251")
    a(f"s_cbranch_vccz {lab}_ok")
    a("s_sleep 1")
    a("s_sub_u32 s59, s59, 1")
    a("s_cmp_lg_u32 s59, 0")
    a(f"s_cbranch_scc1 {lab}")
    a(f"{lab}_ok:")

def poll_shared(a, mask, soff, word, wave):
    lab = a.label("ps")
    a(f"s_cmp_lg_u32 s52, {wave}")
    a(f"s_cbranch_scc1 {lab}_w")
    poll_flags(a, mask, soff)
    lds_count(a, word)
    a(f"s_branch {lab}_d")
    a(f"{lab}_w:")
    lds_wait(a, word, 1)
    a(f"{lab}_d:")

def poll_flags(a, mask, soff):
    lab = a.label("poll")
    a(f"v_and_b32 v250, {mask}, v1")
    a("v_lshlrev_b32 v250, 3, v250")
    a(f"s_mov_b32 s59, {SPIN}")
    a(f"{lab}:")
    a(f"buffer_load_dwordx2 v[252:253], v250, s[16:19], {soff} offen sc1")
    a("s_waitcnt vmcnt(0)")
    a("v_cmp_ne_u64 vcc, s[30:31], v[252:253]")
    a(f"s_cbranch_vccz {lab}_ok")
    a(f"s_sleep {O_.slp}")
    a("s_sub_u32 s59, s59, 1")
    a("s_cmp_lg_u32 s59, 0")
    a(f"s_cbranch_scc1 {lab}")
    a(f"{lab}_ok:")

def tag_issue(a):
    a("v_mov_b32 v249, 0")
    a("buffer_load_dwordx2 v[254:255], v249, s[20:23], 0 offen sc1")
def tag_finish(a):
    lab = a.label("tag")
    a(f"s_mov_b32 s59, {SPIN}")
    a(f"{lab}:")
    a("v_cmp_eq_u32 vcc, 0, v255")
    a(f"s_cbranch_vccz {lab}_ok")
    a("s_sleep 1")
    a("buffer_load_dwordx2 v[254:255], v249, s[20:23], 0 offen sc1")
    a("s_waitcnt vmcnt(0)")
    a("s_sub_u32 s59, s59, 1")
    a("s_cmp_lg_u32 s59, 0")
    a(f"s_cbranch_scc1 {lab}")
    a(f"{lab}_ok:")
    a("v_readfirstlane_b32 s30, v254")
    a("v_readfirstlane_b32 s31, v255")

def flagoff(a, base):
    def f():
        a("s_lshl_b32 s59, s55, 8")
        a("s_lshl_b32 s60, s3, 3")
        a("s_add_u32 s59, s59, s60")
        a(f"s_add_u32 s59, s59, {base}")
    return f

XS = 16; WR = 144; ACC = [176, 192, 208, 224]; GR = 240

def prologue(a, st):
    a(f".globl {NAME}\n.p2align 8\n.type {NAME},@function\n{NAME}:")
    a("s_cmp_ge_u32 s2, 256")
    a("s_cbranch_scc1 L_end")
    a("s_load_dwordx16 s[32:47], s[0:1], 0")
    a("s_load_dwordx4 s[48:51], s[0:1], 64")
    a("v_lshrrev_b32 v2, 6, v0")
    a("v_and_b32 v1, 63, v0")
    a("v_readfirstlane_b32 s52, v2")
    a("v_lshlrev_b32 v2, 4, v1")
    a("s_and_b32 s53, s2, 7")
    a("s_lshr_b32 s54, s2, 3")
    st()
    a("s_and_b32 s55, s53, 1")
    a("s_lshl_b32 s55, s55, 2")
    a("s_and_b32 s56, s54, 3")
    a("s_add_u32 s55, s55, s56")
    a("s_lshr_b32 s56, s53, 1")
    a("s_lshl_b32 s56, s56, 2")
    a("s_bfe_u32 s57, s54, 0x20002")
    a("s_add_u32 s56, s56, s57")
    a("s_lshr_b32 s57, s54, 4")
    a("s_lshl_b32 s3, s56, 1")
    a("s_add_u32 s3, s3, s57")
    a("s_lshl_b32 s58, s55, 1")
    a("s_add_u32 s58, s58, s3")
    a("s_and_b32 s58, s58, 7")
    a("s_and_b32 s68, s52, 3")

def phase1_loader(a, st):
    a("v_lshrrev_b32 v5, 3, v1")
    a("s_lshl_b32 s59, s68, 3")
    a("v_add_u32 v5, s59, v5")
    a("v_and_b32 v7, 7, v1")
    a("v_bfe_u32 v6, v5, 1, 3")
    a("v_xor_b32 v6, v6, v7")
    a("v_lshlrev_b32 v3, 10, v5")
    a("v_lshl_add_u32 v3, v6, 4, v3")
    a("s_lshl_b32 s59, s56, 17")
    a("v_add_u32 v3, s59, v3")
    a("v_mul_u32_u24 v4, 3072, v5")
    a("v_bfe_u32 v6, v1, 4, 1")
    a("v_lshlrev_b32 v6, 2, v6")
    a("v_xor_b32 v6, v6, v7")
    a("v_lshl_add_u32 v4, v6, 4, v4")
    a("s_lshl_b32 s59, s55, 7")
    a("v_add_u32 v4, s59, v4")
    a("s_lshl_b32 s59, s57, 10")
    a("s_add_u32 s59, s59, 1024")
    a("v_add_u32 v9, s59, v4")
    a("v_mov_b32 v248, 0")
    a("s_lshl_b32 s71, s68, 10")
    a("s_mov_b32 s60, s58")
    a("s_mov_b32 s63, 0")
    a("s_cmp_lg_u32 s57, 0")
    a("s_waitcnt lgkmcnt(0)")
    a("s_cselect_b32 s24, s40, s34")
    a("s_cselect_b32 s25, s41, s35")
    a(f"s_mov_b32 s26, {hex(512*1536*2)}")
    a("s_mov_b32 s27, 0x00020000")
    srd(a, 8, 34, 512*1536*2)
    srd(a, 4, 32, 2 << 20)
    a("L_ld_loop:")
    a("s_lshl_b32 s61, s60, 7")
    a(f"s_mul_i32 s62, s60, {64*3072}")
    for i in range(2):
        a(f"s_add_u32 m0, s71, {16384 + i*4096}")
        a(f"s_add_u32 s70, s62, {i*32*3072}")
        a("buffer_load_dwordx4 v9, s[8:11], s70 offen lds")
        a(f"s_add_u32 m0, s71, {24576 + i*4096}")
        a("s_nop 0")
        a("buffer_load_dwordx4 v4, s[24:27], s70 offen lds")
    for i in range(4):
        a(f"s_add_u32 m0, s71, {i*4096}")
        a(f"s_add_u32 s70, s61, {i*32768}")
        a("buffer_load_dwordx4 v3, s[4:7], s70 offen lds")
    a("s_add_u32 s60, s60, 1")
    a("s_and_b32 s60, s60, 7")
    a("s_add_u32 s71, s71, 32768")
    a("s_and_b32 s71, s71, 0x1ffff")
    a("s_add_u32 s63, s63, 1")
    a("s_cmp_eq_u32 s63, 1")
    a("s_cbranch_scc1 L_ld_loop")
    a("s_waitcnt vmcnt(8)")
    a("s_barrier")
    a("s_cmp_lt_u32 s63, 8")
    a("s_cbranch_scc1 L_ld_loop")
    srd(a, 12, 40, 512*1536*2)
    srd(a, 16, 50, WS_BYTES)
    srd(a, 20, 48, 256)
    def kvb(j):
        a(f"s_mul_i32 s62, s60, {64*3072}")
        for i in range(2):
            a(f"s_add_u32 m0, s71, {j*8192 + i*4096}")
            a(f"s_add_u32 s70, s62, {i*32*3072}")
            a("buffer_load_dwordx4 v9, s[12:15], s70 offen lds")
        a("s_add_u32 s60, s60, 1")
        a("s_and_b32 s60, s60, 7")
    for j in range(4): kvb(j)
    a("s_lshl_b32 s59, s68, 2")
    a(f"s_add_u32 s59, s59, {CTL + 16}")
    a("v_mov_b32 v10, s59")
    a("s_waitcnt vmcnt(8)")
    a("s_barrier")
    st()
    if O_.hold == 2:
        a("s_waitcnt vmcnt(0)")
        a("v_mov_b32 v11, 1")
        a("ds_write_b32 v10, v11")
    if O_.hold: lds_wait(a, 4 if O_.hold < 3 else 0, 4)
    for j in range(4, 8): kvb(j)
    tag_issue(a)
    a("s_waitcnt vmcnt(9)")
    a("v_mov_b32 v11, 1")
    a("ds_write_b32 v10, v11")
    st()
    a("s_waitcnt vmcnt(0)")
    a("v_mov_b32 v11, 2")
    a("ds_write_b32 v10, v11")
    st()
    tag_finish(a)

def code_prefetch(a):
    a("s_getpc_b64 s[28:29]")
    a("L_pcref:")
    a("s_lshl_b32 s59, s54, 10")
    a("v_lshlrev_b32 v10, 7, v1")
    a("v_add_u32 v10, s59, v10")
    a("v_cmp_gt_u32 vcc, L_code_end-L_pcref, v10")
    a("s_and_b64 vcc, vcc, 0xff")
    a("v_mov_b32 v11, s29")
    a("s_and_saveexec_b64 s[26:27], vcc")
    a("s_cbranch_execz L_pf_skip")
    a("v_add_co_u32 v10, vcc, s28, v10")
    a("s_nop 1")
    a("v_addc_co_u32 v11, vcc, 0, v11, vcc")
    a("global_load_dword v247, v[10:11], off")
    a("L_pf_skip:")
    a("s_mov_b64 exec, s[26:27]")

def comp_setup(a):
    a("s_waitcnt lgkmcnt(0)")
    srd(a, 20, 48, 256)
    a("s_cmp_lg_u32 s52, 0")
    a("s_cbranch_scc1 L_notw0")
    srd(a, 24, 44, 1024)
    a("s_lshl_b32 s59, s58, 7")
    a("v_add_u32 v5, s59, v2")
    a("v_and_b32 v5, 0x3ff, v5")
    a(f"s_mov_b32 m0, {GW_LDS}")
    a(f"v_mov_b32 v250, {CTL}")
    a("buffer_load_dwordx4 v5, s[24:27], 0 offen lds")
    for i in range(4): a(f"v_mov_b32 v{252+i}, 0")
    a("ds_write_b128 v250, v[252:255]")
    a("ds_write_b128 v250, v[252:255] offset:16")
    a("ds_write_b128 v250, v[252:255] offset:32")
    a("s_cmp_lg_u32 s2, 0")
    a("s_cbranch_scc1 L_notag")
    a("s_memrealtime s[28:29]")
    a("s_waitcnt lgkmcnt(0)")
    a("s_or_b32 s29, s29, 0x40000000")
    a("v_mov_b32 v254, s28")
    a("v_mov_b32 v255, s29")
    a("s_mov_b64 exec, 1")
    a("buffer_store_dwordx2 v[254:255], v252, s[20:23], 0 offen sc1")
    a("s_mov_b64 exec, -1")
    a("L_notag:")
    a("s_waitcnt vmcnt(0) lgkmcnt(0)")
    a("L_notw0:")
    if O_.tlb:
        a("s_cmp_lg_u32 s52, 2")
        a("s_cbranch_scc1 L_notlb")
        srd(a, 16, 50, WS_BYTES)
        a("v_mul_u32_u24 v10, 0x44000, v1")
        a("buffer_load_dword v247, v10, s[16:19], 0 offen sc1")
        srd(a, 24, 46, 2 << 20)
        a("v_lshlrev_b32 v10, 18, v1")
        a("buffer_load_dword v247, v10, s[24:27], 0 offen sc1")
        a("L_notlb:")
    a("v_and_b32 v10, 31, v1")
    a("s_lshl_b32 s59, s68, 12")
    a("v_lshlrev_b32 v11, 7, v10")
    a("v_add_u32 v11, s59, v11")
    a("v_bfe_u32 v12, v1, 1, 3")
    a("v_lshrrev_b32 v13, 5, v1")
    a("v_xor_b32 v12, v12, v13")
    a("v_lshl_add_u32 v5, v12, 4, v11")
    a("v_xor_b32 v6, 32, v5")
    a("v_xor_b32 v7, 64, v5")
    a("v_xor_b32 v8, 96, v5")
    a("v_bfe_u32 v10, v1, 2, 2")
    a("v_lshl_add_u32 v10, v13, 3, v10")
    a("v_lshlrev_b32 v9, 7, v10")
    a("v_bfe_u32 v10, v1, 3, 1")
    a("v_lshl_add_u32 v9, v10, 6, v9")
    a("v_bfe_u32 v10, v1, 4, 1")
    a("v_lshl_add_u32 v9, v10, 5, v9")
    a("v_lshlrev_b32 v3, 17, v10")
    a("v_and_b32 v10, 3, v1")
    a("v_lshl_add_u32 v9, v10, 3, v9")
    a("v_xor_b32 v4, 64, v9")
    a("s_lshl_b32 s69, s55, 8")
    a("s_lshl_b32 s59, s56, 2")
    a("s_add_u32 s59, s59, s68")
    a("s_add_u32 s59, s59, s69")
    a("s_lshl_b32 s70, s59, 11")
    a("v_lshl_add_u32 v3, v13, 8, v3")
    a("v_and_b32 v10, 15, v1")
    a("v_lshl_add_u32 v3, v10, 4, v3")
    a(f"s_mov_b32 s69, {hex(f2u(0.25*LOG2E))}")
    a("v_lshlrev_b32 v0, 4, v13")
    a(f"v_add_u32 v0, {GW_LDS}, v0")
    a("v_mov_b32 v14, 0")
    a("v_mov_b32 v15, 0")
    a("s_lshr_b32 s71, s70, 1")
    srd(a, 16, 50, WS_BYTES)

def pass_a(a, par, st):
    isv = par == 1; gate = False
    def reads(z):
        j = z // 4; s_ = z % 4
        if s_ == 0:
            a("s_barrier")
            if j == 7: st()
            if j and j % 2 == 0:
                for r in (4, 5, 6, 7, 8, 9): a(f"v_xor_b32 v{r}, 0x10000, v{r}")
        so = (j & 1) * 32768
        L = [f"ds_read_b128 {vr(XS + 4*z, 4)}, v{5 + s_} offset:{so}"]
        wr = WR + 16*(z % 2)
        for m in range(4):
            o = so + 16384 + (m >> 1)*8192 + s_*2048
            L.append(f"ds_read_b64_tr_b16 {vr(wr + 4*m, 2)}, v{4 if m & 1 else 9} offset:{o}")
            L.append(f"ds_read_b64_tr_b16 {vr(wr + 4*m + 2, 2)}, v{4 if m & 1 else 9} offset:{o + 512}")
        if gate: L.append(f"ds_read_b128 {vr(GR + 4*(z % 2), 4)}, v0 offset:{z*32}")
        return L
    for x in reads(0): a(x)
    for z in range(32):
        if z == 16: tag_issue(a)
        a("s_waitcnt lgkmcnt(0)")
        wr = WR + 16*(z % 2); x = vr(XS + 4*z, 4)
        R = None
        for m in range(4):
            w = vr(wr + 4*m, 4); v_ = isv and m < 2
            c = "0" if z == 0 else vr(ACC[m], 16)
            a(f"v_mfma_f32_32x32x16_bf16 {vr(ACC[m],16)}, {x if v_ else w}, {w if v_ else x}, {c}")
            if R is None: R = reads(z + 1) if z + 1 < 32 else []
            for y in R[:4]: a(y)
            R = R[4:]
            if gate and m >= 2:
                for i in (2*(m-2), 2*(m-2)+1): a(f"v_dot2c_f32_bf16 v{14 + (i & 1)}, v{XS+4*z+i}, v{GR+4*(z%2)+i}")
    a("v_xor_b32 v4, 0x10000, v4")
    a("v_xor_b32 v9, 0x10000, v9")

def pass_b(a, isv, waits, gate):
    GB4 = 208
    nr = 5 if gate else 4
    def reads(z):
        if z in waits: waits[z]()
        wr = WR + 8*(z % 4)
        L = []
        for ft in range(2):
            L.append(f"ds_read_b64_tr_b16 {vr(wr + 4*ft, 2)}, v{4 if ft else 9} offset:{z*2048}")
            L.append(f"ds_read_b64_tr_b16 {vr(wr + 4*ft + 2, 2)}, v{4 if ft else 9} offset:{z*2048 + 512}")
        if gate: L.append(f"ds_read_b128 {vr(GB4 + 4*(z % 4), 4)}, v0 offset:{z*32}")
        return L
    PF = 3
    for z in range(PF):
        for x in reads(z): a(x)
    for z in range(32):
        R = reads(z + PF) if z + PF < 32 else []
        a(f"s_waitcnt lgkmcnt({nr * (min(z + PF, 32) - z - 1)})")
        wr = WR + 8*(z % 4); x = vr(XS + 4*z, 4)
        for ft in range(2):
            w = vr(wr + 4*ft, 4)
            c = "0" if z == 0 else vr(ACC[ft], 16)
            a(f"v_mfma_f32_32x32x16_bf16 {vr(ACC[ft],16)}, {x if isv else w}, {w if isv else x}, {c}")
            if gate:
                for i in (2*ft, 2*ft+1): a(f"v_dot2c_f32_bf16 v{14 + (i & 1)}, v{XS+4*z+i}, v{GB4+4*(z%4)+i}")
            for y in (R[:2] if ft == 0 else R[2:]): a(y)

def kv_epilogue(a, isv, acc, b):
    for ft in range(2):
        c = acc[ft]
        for i in range(8): a(f"v_cvt_pk_bf16_f32 v{c+i}, v{c+2*i}, v{c+2*i+1}")
        if not isv:
            for e in range(2):
                a(f"s_add_u32 s59, s70, {KV + (b*32 + 2*ft + e)*131072}")
                a(f"buffer_store_dwordx4 {vr(c+4*e,4)}, v2, s[16:19], s59 offen {sc}")
        else:
            a(f"s_add_u32 s59, s70, {KV + (b*32 + 2*ft)*131072}")
            a(f"buffer_store_dwordx4 {vr(c,4)}, v3, s[16:19], s59 offen offset:1024 {sc}")
            a(f"buffer_store_dwordx4 {vr(c+4,4)}, v3, s[16:19], s59 offen offset:1536 {sc}")

def q_epilogue(a, b):
    for ft in range(2):
        c = ACC[2 + ft]
        for i in range(16): a(f"v_mul_f32 v{c+i}, s69, v{c+i}")
        for i in range(8): a(f"v_cvt_pk_bf16_f32 v{c+i}, v{c+2*i}, v{c+2*i+1}")
        for e in range(2):
            a(f"s_add_u32 s59, s71, {QF + (b*32 + 2*ft + e)*65536}")
            a(f"buffer_store_dwordx4 {vr(c+4*e,4)}, v2, s[16:19], s59 offen {sc}")

DKV = 232
DQ = [208, 224]
DADR = 248
def phase1_comp(a, st):
    comp_setup(a)
    n0 = st.n
    lw = lambda lvl: (lambda: lds_wait(a, 16, lvl, four=True))
    a("s_cmp_lg_u32 s57, 0")
    a("s_cbranch_scc1 L_p1_v")
    for par in (0, 1):
        if par: a("L_p1_v:"); st.n = n0
        pass_a(a, par, st)
        a("s_nop 7")
        kv_epilogue(a, par == 1, ACC[:2], 0)
        if par == 0: q_epilogue(a, 0)
        lds_count(a, 4)
        st()
        if par == 1:
            for ft in range(2):
                c = ACC[2 + ft]
                for i in range(16): a(f"v_mul_f32 v{c+i}, s69, v{c+i}")
                for i in range(8): a(f"v_cvt_pk_bf16_f32 v{c+i}, v{c+2*i}, v{c+2*i+1}")
        else:
            a("v_mov_b32 v10, 0")
            a("v_mov_b32 v11, 0")
            def gr(bt):
                for i in range(4): a(f"ds_read_b128 {vr(WR + 16*(bt & 1) + 4*i, 4)}, v0 offset:{(4*bt + i)*32}")
            gr(0)
            for bt in range(8):
                if bt < 7: gr(bt + 1)
                a(f"s_waitcnt lgkmcnt({4 if bt < 7 else 0})")
                for i in range(16): a(f"v_dot2c_f32_bf16 v{(14, 15, 10, 11)[i & 3]}, v{XS + 16*bt + i}, v{WR + 16*(bt & 1) + i}")
        a("s_waitcnt vmcnt(0)")
        st()
        tag_finish(a)
        lds_count(a, 0, 4, flagoff(a, FA))
        if O_.prio: a("s_setprio 3")
        pass_b(a, par == 1, {0: lw(1), 16: lw(2)}, False)
        if par == 0:
            a(f"v_and_b32 v{DADR}, 31, v1")
            a(f"v_lshlrev_b32 v{DADR}, 2, v{DADR}")
            a("v_add_f32 v10, v10, v11")
            a("v_add_f32 v14, v14, v15")
            a("v_add_f32 v14, v14, v10")
            crossop(a, "v_add_f32", 14, 15)
            a(f"v_mul_f32 v14, {hex(f2u(-LOG2E))}, v14")
            a("v_exp_f32 v14, v14")
            a("s_nop 0")
            a("v_add_f32 v14, 1.0, v14")
            a(f"v_rcp_f32 v{DQ[0]}, v14")
        else:
            a(f"v_mov_b32 v{DADR}, v3")
            a("s_nop 10")
        for ft in range(2):
            for i in range(8): a(f"v_cvt_pk_bf16_f32 v{DKV+8*ft+i}, v{ACC[ft]+2*i}, v{ACC[ft]+2*i+1}")
        if par == 0: a("s_branch L_p1_end")
    a("L_p1_end:")
    a("s_mov_b32 s0, s70")
    a("s_mov_b32 s1, s57")
    a("s_lshl_b32 s59, s56, 2")
    a("s_add_u32 s59, s59, s68")
    a("s_lshl_b32 s59, s59, 7")
    a("s_lshl_b32 s60, s55, 13")
    a("s_add_u32 s33, s59, s60")
    st()

def deferred_stores(a):
    a("s_cmp_lg_u32 s1, 0")
    a("s_cbranch_scc1 L_def_v")
    for i in range(4):
        a(f"s_add_u32 s59, s0, {KV + (32 + i)*131072}")
        a(f"buffer_store_dwordx4 {vr(DKV+4*i,4)}, v2, s[16:19], s59 offen {sc}")
    a(f"s_add_u32 s59, s33, {GO}")
    a(f"buffer_store_dword v{DQ[0]}, v{DADR}, s[16:19], s59 offen {sc}")
    a("s_branch L_def_done")
    a("L_def_v:")
    for ft in range(2):
        a(f"s_add_u32 s59, s0, {KV + (32 + 2*ft)*131072}")
        a(f"buffer_store_dwordx4 {vr(DKV+8*ft,4)}, v{DADR}, s[16:19], s59 offen offset:1024 {sc}")
        a(f"buffer_store_dwordx4 {vr(DKV+8*ft+4,4)}, v{DADR}, s[16:19], s59 offen offset:1536 {sc}")
    a("s_lshr_b32 s60, s0, 1")
    for i in range(4):
        a(f"s_add_u32 s59, s60, {QF + (32 + i)*65536}")
        a(f"buffer_store_dwordx4 {vr(DQ[i>>1]+4*(i&1),4)}, v2, s[16:19], s59 offen {sc}")
    a("L_def_done:")

Q0 = 8; Q1 = 12; QB = 16
SB = [20, 36]; P = 52; OA = [60, 76]; CF = 92; CD = 108; CR = 124
NA = 140; NB = 141; GA = 142; GB_ = 143; VK = 144; VV = 145; NI = 146; NBF = 147; MX = 148; VKB = 149; VVB = 150; T0_ = 151; T1_ = 5; VMG = 6; VWO = 7
KVB = [152 + 12*i for i in range(4)]; OB = 200; CFB = 216

def kv_loads(a, buf, vk, vv, soff, off):
    a(f"buffer_load_dwordx4 {vr(buf,4)}, v{vk}, s[16:19], {soff} offen offset:{off} {sc}")
    a("s_mov_b64 exec, s[24:25]")
    a(f"buffer_load_dwordx4 {vr(buf+4,4)}, v{vv}, s[16:19], {soff} offen offset:{off+1024} {sc}")
    a(f"buffer_load_dwordx4 {vr(buf+8,4)}, v{vv}, s[16:19], {soff} offen offset:{off+1536} {sc}")
    a("s_mov_b64 exec, -1")

def tstep(a, S, Sn, pv1, qk, pv0, after_pv1=None, before_qk=None, after_pv0=None):
    def E(i): a(f"v_exp_f32 v{S+i}, v{S+i}")
    def C(i): a(f"v_cvt_pk_bf16_f32 v{P+i}, v{S+2*i}, v{S+2*i+1}")
    E(0); E(1)
    if pv1: a(f"v_mfma_f32_32x32x16_bf16 {vr(pv1[0],16)}, {vr(pv1[1],4)}, {vr(P+4,4)}, {vr(pv1[0],16)}")
    if after_pv1: after_pv1()
    E(2); E(3); C(0); E(4); E(5); C(1)
    if before_qk: before_qk()
    if qk: a(f"v_mfma_f32_32x32x16_bf16 {vr(Sn,16)}, {vr(qk[0],4)}, {vr(qk[1],4)}, {vr(qk[2],16)}")
    E(6); E(7); C(2); E(8); E(9); C(3); E(10); E(11)
    a(f"v_mfma_f32_32x32x16_bf16 {vr(pv0[0],16)}, {vr(pv0[1],4)}, {vr(P,4)}, {'0' if pv0[2] else vr(pv0[0],16)}")
    if after_pv0: after_pv0()
    C(4); E(12); E(13); C(5); E(14); E(15); C(6); C(7)

def finalize(a, O, gate, flag_sgpr, fb_label, sofs):
    a(f"v_rcp_f32 v{T0_}, v{O+8}")
    a(f"v_cmp_gt_f32 s[60:61], s26, v{O+8}")
    a(f"v_mul_f32 v{T0_}, v{gate}, v{T0_}")
    for i in range(8): a(f"v_mul_f32 v{O+i}, v{T0_}, v{O+i}")
    a(f"v_add_f32 v{T1_}, |v{O}|, |v{O+1}|")
    for i in range(2, 8): a(f"v_add_f32 v{T1_}, v{T1_}, |v{O+i}|")
    a(f"v_cmp_gt_f32 s[62:63], s27, v{T1_}")
    for i in range(4): a(f"v_cvt_pk_bf16_f32 v{O+12+i}, v{O+2*i}, v{O+2*i+1}")
    a("s_and_b64 s[60:61], s[60:61], s[62:63]")
    a("s_cmp_eq_u64 s[60:61], -1")
    a(f"s_cselect_b32 s60, 1, {flag_sgpr}")
    a("s_cmp_eq_u32 s60, 0")
    a(f"s_cbranch_scc1 {fb_label}")
    a(f"buffer_store_dwordx4 {vr(O+12,4)}, v2, s[16:19], {sofs} offen {sc}")

def crossop(a, op, reg, tmp):
    a(f"v_mov_b32 v{tmp}, v{reg}")
    a("s_nop 1")
    a(f"v_permlane32_swap_b32 v{reg}, v{tmp}")
    a("s_nop 1")
    a(f"{op} v{reg}, v{reg}, v{tmp}")

def p3_roles(a):
    a("s_lshl_b32 s15, s53, 2")
    a("s_and_b32 s59, s54, 3")
    a("s_add_u32 s15, s15, s59")
    a("s_lshr_b32 s12, s54, 2")
    a("s_and_b32 s13, s52, 1")
    a("s_lshr_b32 s14, s52, 1")
    a("s_lshl_b32 s23, s15, 1")
    a("s_add_u32 s23, s23, s13")
    srd(a, 4, 36, 512*512*2)
    srd(a, 8, 42, 512*512*2)
    a("s_lshl_b32 s20, s14, 17")
    a("s_lshl_b32 s59, s13, 13")
    a("s_add_u32 s20, s20, s59")
    a("s_lshl_b32 s59, s12, 7")
    a("s_add_u32 s20, s20, s59")
    a("s_lshl_b32 s21, s14, 14")
    a("s_lshl_b32 s59, s13, 10")
    a("s_add_u32 s21, s21, s59")
    a(f"v_lshrrev_b32 v{T0_}, 3, v1")
    a(f"v_lshlrev_b32 v{VWO}, 10, v{T0_}")
    a(f"v_bfe_u32 v{T0_}, v1, 4, 1")
    a(f"v_lshlrev_b32 v{T0_}, 2, v{T0_}")
    a(f"v_and_b32 v{T1_}, 7, v1")
    a(f"v_xor_b32 v{T0_}, v{T0_}, v{T1_}")
    a(f"v_lshl_add_u32 v{VWO}, v{T0_}, 4, v{VWO}")

def wo_dma(a, i):
    a(f"s_add_u32 s59, s12, {i}")
    a("s_and_b32 s59, s59, 7")
    a("s_lshl_b32 s59, s59, 14")
    a(f"s_add_u32 m0, s21, {i*2048}")
    a("s_add_u32 s59, s59, s20")
    a(f"buffer_load_dwordx4 v{VWO}, s[8:11], s59 offen lds")
    a(f"s_add_u32 m0, s21, {65536 + i*2048}")
    a("s_nop 0")
    a(f"buffer_load_dwordx4 v{VWO}, s[4:7], s59 offen lds")

def o_loads(a, dst, b):
    a("s_lshl_b32 s63, s14, 19")
    a("s_lshl_b32 s59, s23, 10")
    a("s_add_u32 s63, s63, s59")
    a(f"s_add_u32 s63, s63, {OF + b*32*65536}")
    for i in range(8):
        a(f"s_add_u32 s59, s12, {i}")
        a("s_and_b32 s59, s59, 7")
        a("s_lshl_b32 s59, s59, 16")
        a("s_add_u32 s59, s59, s63")
        a(f"buffer_load_dwordx4 {vr(dst+4*i,4)}, v2, s[16:19], s59 offen {sc}")

def fo_off(a, base):
    def f():
        a("s_lshl_b32 s59, s54, 7")
        a("s_lshl_b32 s60, s53, 3")
        a("s_add_u32 s59, s59, s60")
        a(f"s_add_u32 s59, s59, {base}")
    return f

def phase2(a, st):
    D = O_.D
    a("L_p2:")
    a("s_lshl_b32 s56, s53, 2")
    a("s_add_u32 s69, s68, s56")
    a("s_lshr_b32 s56, s52, 2")
    a("s_lshl_b32 s57, s54, 1")
    a("s_add_u32 s58, s57, s56")
    a("s_lshl_b32 s59, s69, 6")
    a("s_add_u32 s65, s59, s58")
    a("s_lshl_b32 s65, s65, 10")
    a("s_add_u32 s64, s59, s57")
    a("s_lshl_b32 s64, s64, 10")
    a("s_mov_b32 s24, 0x0000ffff")
    a("s_mov_b32 s25, 0x0000ffff")
    p3_roles(a)
    a("s_mov_b32 s60, 0x00110000")
    a("s_mov_b32 s61, 0x00110000")
    a(f"v_mov_b32 v{T0_}, 0x3f803f80")
    a(f"v_cndmask_b32 v{T0_}, 0, v{T0_}, s[60:61]")
    for b in KVB[:D]:
        for i in range(8): a(f"v_mov_b32 v{b+4+i}, v{T0_}")
    a("s_lshl_b32 s60, s69, 17")
    a(f"s_add_u32 s60, s60, {KV}")
    a(f"v_add_u32 v{VK}, s60, v2")
    a(f"v_lshrrev_b32 v{T0_}, 5, v1")
    a(f"v_lshlrev_b32 v{T0_}, 8, v{T0_}")
    a(f"v_and_b32 v{T1_}, 15, v1")
    a(f"v_lshl_add_u32 v3, v{T1_}, 4, v{T0_}")
    a(f"v_add_u32 v{VV}, s60, v3")
    a(f"s_add_u32 s60, s60, {32*131072}")
    a(f"v_add_u32 v{VKB}, s60, v2")
    a(f"v_add_u32 v{VVB}, s60, v3")
    a(f"s_mov_b32 s26, {hex(f2u(2.0**64) if not O_.force_fb else f2u(0.5))}")
    a("s_mov_b32 s27, 0x7f800000")
    a("s_mov_b32 s28, 0")
    a("s_mov_b32 s29, 0")
    a(f"v_mov_b32 v{NI}, {hex(NEGINF)}")
    for r in range(16): a(f"v_mov_b32 v{OA[0]+r}, 0")
    for r in range(16): a(f"v_mov_b32 v{OA[1]+r}, 0")
    a(f"v_mov_b32 v{NA}, 0")
    a(f"v_mov_b32 v{NB}, 0")
    a("s_lshl_b32 s22, s54, 12")
    a("s_lshl_b32 s60, s56, 16")
    a("s_add_u32 s22, s22, s60")
    a("s_and_b32 s66, s22, 0x1ffff")
    a(f"s_mov_b32 s67, {O_.n1}")
    a("s_mov_b32 s70, 0")
    a("s_cmp_lg_u32 s56, 0")
    a(f"s_cselect_b32 s71, -1, {O_.n1 - 1}")
    a("s_lshl_b32 s60, s53, 8")
    a(f"s_add_u32 s60, s60, {FA}")
    st()
    if O_.shp: poll_shared(a, 31, "s60", 36, 4)
    else: poll_flags(a, 31, "s60")
    st()
    a(f"buffer_load_dwordx4 {vr(Q0,4)}, v2, s[16:19], s64 offen {sc}")
    a(f"buffer_load_dwordx4 {vr(Q1,4)}, v2, s[16:19], s64 offen offset:1024 {sc}")
    a("s_lshl_b32 s60, s57, 11")
    a(f"buffer_load_dwordx4 {vr(SB[1],4)}, v{VK}, s[16:19], s60 offen {sc}")
    a(f"buffer_load_dwordx4 {vr(SB[1]+4,4)}, v{VK}, s[16:19], s60 offen offset:2048 {sc}")
    a("L_A_entry:")
    for n in range(D - 1):
        if n and n % 2 == 0:
            a("s_add_u32 s66, s66, 4096")
            a("s_and_b32 s66, s66, 0x1ffff")
        kv_loads(a, KVB[n], VK, VV, "s66", 2048 * (n % 2))
    for r in range(4): a(f"v_mov_b32 v{P+4+r}, 0")
    a(f"s_waitcnt vmcnt({3*(D-1)})")
    a("s_cmp_lg_u32 s70, 0")
    a("s_cbranch_scc1 L_A_seg2")
    for i in range(4): a(f"v_dot2c_f32_bf16 v{NA}, v{Q0+i}, v{SB[1]+i}")
    a("s_nop 2")
    for i in range(4): a(f"v_dot2c_f32_bf16 v{NB}, v{Q1+i}, v{SB[1]+4+i}")
    a(f"v_mov_b32 v{T0_}, v{NA}")
    a("s_nop 1")
    a(f"v_mov_b32 v{T1_}, v{NB}")
    a(f"v_permlane32_swap_b32 v{NA}, v{T0_}")
    a("s_nop 0")
    a(f"v_permlane32_swap_b32 v{NB}, v{T1_}")
    a("s_nop 1")
    a(f"v_add_f32 v{NA}, v{NA}, v{T0_}")
    a(f"v_add_f32 v{NB}, v{NB}, v{T1_}")
    a(f"v_max_f32 v{NA}, -v{NA}, -v{NB}")
    for r in range(16): a(f"v_mov_b32 v{CF+r}, v{NA}")
    if O_.prio: a("s_setprio 3")
    st()
    a(f"s_waitcnt vmcnt({3*(D-2)})")
    a("s_cmp_lg_u32 s56, 0")
    a("s_cbranch_scc1 L_A_wo")
    deferred_stores(a)
    a("s_branch L_A_go")
    a("L_A_wo:")
    if O_.wopf:
        a(f"v_lshlrev_b32 v{T0_}, 10, v1")
        a("s_and_b32 s59, s68, 1")
        a("s_lshl_b32 s59, s59, 18")
        a("s_lshl_b32 s60, s12, 7")
        a("s_add_u32 s59, s59, s60")
        a("s_and_b32 s60, s54, 3")
        a("s_lshl_b32 s60, s60, 16")
        a("s_add_u32 s59, s59, s60")
        a("s_cmp_lt_u32 s68, 2")
        a("s_cbranch_scc1 L_p2_woa")
        a(f"buffer_load_dword v249, v{T0_}, s[8:11], s59 offen")
        a("s_branch L_p2_nowo")
        a("L_p2_woa:")
        a(f"buffer_load_dword v249, v{T0_}, s[4:7], s59 offen")
        a("L_p2_nowo:")
    a("s_branch L_A_go")
    a("L_A_seg2:")
    a(f"s_waitcnt vmcnt({3*(D-2)})")
    lds_count(a, 32, 8, fo_off(a, FOB))
    if O_.prio: a("s_setprio 2")
    a("L_A_go:")
    a(f"v_mfma_f32_32x32x16_bf16 {vr(SB[0],16)}, {vr(KVB[0],4)}, {vr(Q0,4)}, {vr(CF,16)}")
    a("s_nop 11")
    a(".p2align 3")
    a("L_A_loop:")
    for n in range(D):
        cur = KVB[n]; prv = KVB[(n-1) % D]; nx = KVB[(n+1) % D]
        def ld(n=n, prv=prv):
            if (n + D - 1) % 2 == 0:
                a("s_add_u32 s66, s66, 4096")
                a("s_and_b32 s66, s66, 0x1ffff")
            kv_loads(a, prv, VK, VV, "s66", 2048 * ((n + D - 1) % 2))
        tstep(a, SB[0], SB[1], (OA[1], prv+8), (cur, Q1, CF), (OA[0], cur+4, False), after_pv1=ld)
        tstep(a, SB[1], SB[0], (OA[0], cur+8), (nx, Q0, CF), (OA[1], cur+4, False), before_qk=lambda: a(f"s_waitcnt vmcnt({3*(D-2)})"))
    a("s_sub_u32 s67, s67, 1")
    a("s_cmp_eq_u32 s67, s71")
    a("s_cbranch_scc1 L_A_hook")
    a("s_cmp_lg_u32 s67, 0")
    a("s_cbranch_scc1 L_A_loop")
    a(f"v_mfma_f32_32x32x16_bf16 {vr(OA[1],16)}, {vr(KVB[D-1]+8,4)}, {vr(P+4,4)}, {vr(OA[1],16)}")
    a("s_cmp_lg_u32 s70, 0")
    a("s_cbranch_scc1 L_A_done")
    a("s_lshl_b32 s60, s53, 8")
    a(f"s_add_u32 s60, s60, {FB}")
    poll_flags(a, 31, "s60")
    a(f"s_add_u32 s60, s65, {QF + 32*65536}")
    a(f"buffer_load_dwordx4 {vr(QB,4)}, v2, s[16:19], s60 offen {sc}")
    a(f"v_and_b32 v{T0_}, 31, v1")
    a(f"v_lshlrev_b32 v{T0_}, 2, v{T0_}")
    a("s_lshl_b32 s60, s58, 7")
    a("s_lshl_b32 s61, s53, 13")
    a("s_add_u32 s60, s60, s61")
    a(f"s_add_u32 s60, s60, {GO}")
    a(f"buffer_load_dword v{GA}, v{T0_}, s[16:19], s60 offen {sc}")
    def btile_off(i):
        a(f"s_add_i32 s66, s58, {i-8}")
        a("s_max_i32 s66, s66, 0")
        a("s_lshl_b32 s66, s66, 11")
    a("L_B_start:")
    vm = VM(a)
    def bload(n):
        btile_off(8 - n)
        kv_loads(a, KVB[n % 4], VKB, VVB, "s66", 0)
        vm.issue(("k", n)); vm.issue(("t", n)); vm.issue(("t", n))
    for n in range(3): bload(n)
    a("s_cmp_lg_u32 s28, 0")
    a("s_cbranch_scc1 L_B_again")
    lds_wait(a, 8, 4)
    a(f"v_mov_b32 v{NB}, 0")
    a("s_waitcnt vmcnt(8)")
    for i in range(4): a(f"v_dot2c_f32_bf16 v{NB}, v{QB+i}, v{KVB[0]+i}")
    a(f"v_sub_f32 v{GB_}, 1.0, v{GA}")
    a("s_nop 1")
    crossop(a, "v_add_f32", NB, T0_)
    a(f"v_sub_f32 v{NB}, 0, v{NB}")
    a("L_B_again:")
    a("s_cmp_ge_u32 s58, 8")
    a("s_cselect_b64 s[60:61], -1, 0")
    a(f"v_cndmask_b32 v{NBF}, v{NI}, v{NB}, s[60:61]")
    for r in range(16):
        i0 = 8*(r >> 2) + (r & 3)
        sp = 60 + 2*(r & 1)
        a(f"s_mov_b32 s{sp}, {hex((0xffffffff << i0) & 0xffffffff)}")
        a(f"s_mov_b32 s{sp+1}, {hex((0xffffffff << (i0+4)) & 0xffffffff)}")
        a(f"v_cndmask_b32 v{CD+r}, v{NI}, v{NB}, s[{sp}:{sp+1}]")
        a(f"v_cndmask_b32 v{CR+r}, v{NBF}, v{NI}, s[{sp}:{sp+1}]")
    for r in range(16): a(f"v_mov_b32 v{CFB+r}, v{NB}")
    vm.wait(("t", 0))
    a(f"v_mfma_f32_32x32x16_bf16 {vr(SB[0],16)}, {vr(KVB[0],4)}, {vr(QB,4)}, {vr(CD,16)}")
    a("s_nop 11")
    rare = []
    for n in range(9):
        i = 8 - n
        cur = KVB[n % 4]; prv = KVB[(n-1) % 4]; nx = KVB[(n+1) % 4]
        def ld(n=n):
            if n + 3 <= 8: bload(n + 3)
        def pre(n=n, i=i):
            if n + 1 <= 8: vm.wait(("t", n + 1))
            if i - 1 >= 1:
                lb = a.label("bmask")
                a(f"s_cmp_eq_u32 s58, {8-i}")
                a(f"s_cbranch_scc1 {lb}")
                a(f"{lb}_r:")
                rare.append(lb)
        def wo(n=n):
            if n < 8: wo_dma(a, n); vm.issue("wo"); vm.issue("wo")
        tstep(a, SB[n & 1], SB[(n+1) & 1], (OB, prv+8) if n > 0 else None,
              (nx, QB, CFB if i - 1 >= 1 else CR) if i >= 1 else None, (OB, cur+4, n == 0), after_pv1=ld, before_qk=pre, after_pv0=wo)
    a("s_nop 1")
    a(f"v_mfma_f32_32x32x16_bf16 {vr(OB,16)}, {vr(KVB[0]+8,4)}, {vr(P+4,4)}, {vr(OB,16)}")
    a(f"s_add_u32 s66, s65, {OF + 32*65536}")
    a("s_nop 10")
    finalize(a, OB, GB_, "s28", "L_B_fb", "s66")
    a(f"s_add_u32 s66, s22, {O_.n1 * D * 2048}")
    a("s_and_b32 s66, s66, 0x1ffff")
    a(f"s_mov_b32 s67, {32 // D - O_.n1}")
    a("s_mov_b32 s70, 1")
    a(f"s_mov_b32 s71, {O_.pr1}")
    st()
    a("s_branch L_A_entry")
    for lb in rare:
        a(f"{lb}:")
        a("s_nop 7")
        for r in range(16): a(f"v_mov_b32 v{CFB+r}, v{NI}")
        a("s_nop 1")
        a(f"s_branch {lb}_r")
    a("L_A_hook:")
    a("s_cmp_lg_u32 s70, 0")
    a("s_cbranch_scc1 L_A_prio")
    lds_count(a, 8, 4, flagoff(a, FB))
    a("s_branch L_A_loop")
    if True:
        a("L_A_prio:")
        a(f"s_cmp_eq_u32 s71, {O_.pr0}")
        a("s_cbranch_scc1 L_A_prio0")
        a(f"s_mov_b32 s71, {O_.pr0}")
        if O_.prio: a("s_setprio 1")
        a("s_lshl_b32 s60, s15, 7")
        a(f"s_add_u32 s60, s60, {FOB}")
        poll_flags(a, 7, "s60")
        o_loads(a, 108, 1)
        a("s_branch L_A_loop")
        a("L_A_prio0:")
        if O_.prio: a("s_setprio 0")
        a("s_branch L_A_loop")
    a("L_A_done:")
    st()
    a("s_xor_b32 s60, s52, 4")
    a(f"s_mul_i32 s60, s60, {MBLK}")
    a(f"s_add_u32 s60, s60, {MERGE_LDS}")
    a(f"v_add_u32 v{VMG}, s60, v2")
    a(f"v_and_b32 v{MX}, 31, v1")
    a(f"v_lshlrev_b32 v{MX}, 2, v{MX}")
    a(f"v_add_u32 v{T1_}, s60, v{MX}")
    a("s_nop 3")
    a("s_cmp_lg_u32 s56, 0")
    a("s_cbranch_scc1 L_mg1")
    a(f"ds_write_b128 v{VMG}, {vr(OA[1],4)}")
    a(f"ds_write_b128 v{VMG}, {vr(OA[1]+4,4)} offset:1024")
    a(f"ds_write_b32 v{T1_}, v{OA[1]+8} offset:2048")
    a("s_branch L_mg2")
    a("L_mg1:")
    a(f"ds_write_b128 v{VMG}, {vr(OA[0],4)}")
    a(f"ds_write_b128 v{VMG}, {vr(OA[0]+4,4)} offset:1024")
    a(f"ds_write_b32 v{T1_}, v{OA[0]+8} offset:2048")
    a("s_waitcnt lgkmcnt(0)")
    for i in range(9): a(f"v_mov_b32 v{OA[0]+i}, v{OA[1]+i}")
    for i in range(4): a(f"v_mov_b32 v{Q0+i}, v{Q1+i}")
    a("L_mg2:")
    a(f"s_mul_i32 s60, s52, {MBLK}")
    a(f"s_add_u32 s60, s60, {MERGE_LDS}")
    a(f"v_add_u32 v{VMG}, s60, v2")
    a(f"v_add_u32 v{MX}, s60, v{MX}")
    a("s_waitcnt lgkmcnt(0)")
    a("s_barrier")
    a(f"ds_read_b128 {vr(SB[0],4)}, v{VMG}")
    a(f"ds_read_b128 {vr(SB[0]+4,4)}, v{VMG} offset:1024")
    a(f"ds_read_b32 v{SB[0]+8}, v{MX} offset:2048")
    a(f"s_add_u32 s66, s65, {OF}")
    a("s_waitcnt lgkmcnt(0)")
    for i in range(9): a(f"v_add_f32 v{OA[0]+i}, v{OA[0]+i}, v{SB[0]+i}")
    a("L_A_fin:")
    finalize(a, OA[0], GA, "s29", "L_A_fb", "s66")

def phase2_slow(a):
    K0 = KVB[0]
    def maxtile(Q, C, vk):
        a(f"buffer_load_dwordx4 {vr(K0,4)}, v{vk}, s[16:19], s67 offen {sc}")
        a("s_waitcnt vmcnt(0)")
        a(f"v_mfma_f32_32x32x16_bf16 {vr(SB[0],16)}, {vr(K0,4)}, {vr(Q,4)}, {C}")
        a("s_nop 15")
        for i in range(8): a(f"v_max3_f32 v{MX}, v{SB[0]+2*i}, v{SB[0]+2*i+1}, v{MX}")
    a("L_A_fb:")
    a("s_mov_b32 s29, 1")
    a(f"v_mov_b32 v{MX}, v{NI}")
    a("s_mov_b32 s67, 0")
    a("L_A_fb1:")
    maxtile(Q0, "0", VK)
    a("s_add_u32 s67, s67, 2048")
    a("s_cmp_lt_u32 s67, 131072")
    a("s_cbranch_scc1 L_A_fb1")
    crossop(a, "v_max_f32", MX, T0_)
    for r in range(16): a(f"v_sub_f32 v{CF+r}, 0, v{MX}")
    for r in range(16): a(f"v_mov_b32 v{OA[0]+r}, 0")
    a("s_mov_b32 s67, 0")
    a("L_A_fb2:")
    kv_loads(a, K0, VK, VV, "s67", 0)
    a("s_waitcnt vmcnt(0)")
    a(f"v_mfma_f32_32x32x16_bf16 {vr(SB[0],16)}, {vr(K0,4)}, {vr(Q0,4)}, {vr(CF,16)}")
    a("s_nop 15")
    for i in range(16): a(f"v_exp_f32 v{SB[0]+i}, v{SB[0]+i}")
    a("s_nop 0")
    for i in range(8): a(f"v_cvt_pk_bf16_f32 v{P+i}, v{SB[0]+2*i}, v{SB[0]+2*i+1}")
    a("s_nop 1")
    a(f"v_mfma_f32_32x32x16_bf16 {vr(OA[0],16)}, {vr(K0+4,4)}, {vr(P,4)}, {vr(OA[0],16)}")
    a(f"v_mfma_f32_32x32x16_bf16 {vr(OA[0],16)}, {vr(K0+8,4)}, {vr(P+4,4)}, {vr(OA[0],16)}")
    a("s_nop 15")
    a("s_add_u32 s67, s67, 2048")
    a("s_cmp_lt_u32 s67, 131072")
    a("s_cbranch_scc1 L_A_fb2")
    a("s_branch L_A_fin")
    a("L_B_fb:")
    a("s_mov_b32 s28, 1")
    a(f"v_mov_b32 v{MX}, v{NI}")
    for r in range(16): a(f"v_mov_b32 v{CFB+r}, v{NB}")
    a("s_lshl_b32 s67, s58, 11")
    maxtile(QB, vr(CD,16), VKB)
    a("s_add_i32 s67, s58, -8")
    a("s_max_i32 s67, s67, 0")
    a("s_lshl_b32 s67, s67, 11")
    maxtile(QB, vr(CR,16), VKB)
    a("s_min_u32 s60, s58, 7")
    a("s_lshl_b32 s67, s58, 11")
    a("L_B_fb1:")
    a("s_cmp_eq_u32 s60, 0")
    a("s_cbranch_scc1 L_B_fb2")
    a("s_sub_u32 s67, s67, 2048")
    maxtile(QB, vr(CFB,16), VKB)
    a("s_sub_u32 s60, s60, 1")
    a("s_branch L_B_fb1")
    a("L_B_fb2:")
    crossop(a, "v_max_f32", MX, T0_)
    a(f"v_sub_f32 v{NB}, v{NB}, v{MX}")
    a("s_branch L_B_start")

def phase3(a, st):
    OFB = 108; OFA = 20; AC = [200, 216]; WB = [152, 160]
    a("v_lshrrev_b32 v9, 5, v1")
    a("v_bfe_u32 v10, v1, 2, 2")
    a("v_lshl_add_u32 v11, v9, 2, v10")
    a("v_lshlrev_b32 v4, 7, v11")
    a("v_and_b32 v11, 1, v1")
    a("v_lshl_add_u32 v4, v11, 5, v4")
    a("v_bfe_u32 v11, v1, 4, 1")
    a("v_lshl_add_u32 v4, v11, 4, v4")
    a("v_bfe_u32 v11, v1, 1, 1")
    a("v_lshl_add_u32 v4, v11, 3, v4")
    a("s_lshl_b32 s60, s14, 14")
    a("v_add_u32 v4, s60, v4")
    a("v_bfe_u32 v11, v1, 3, 1")
    a("v_lshlrev_b32 v11, 6, v11")
    a("v_xor_b32 v12, 64, v11")
    a("v_add_u32 v5, v4, v12")
    a("v_add_u32 v4, v4, v11")
    a("v_add_u32 v13, 0x10000, v4")
    a("v_add_u32 v14, 0x10000, v5")
    a("s_lshl_b32 s61, s15, 7")
    srd(a, 24, 46, 2 << 20)
    a("s_lshl_b32 s64, s13, 15")
    a("s_lshl_b32 s65, s14, 11")
    a("s_add_u32 s65, s65, s64")
    a("v_add_u32 v6, s65, v2")
    a("s_lshl_b32 s65, s14, 13")
    a("s_add_u32 s65, s65, s64")
    a("v_add_u32 v7, s65, v2")
    a("v_and_b32 v8, 31, v1")
    a("v_lshlrev_b32 v8, 10, v8")
    a("v_lshl_add_u32 v8, v9, 5, v8")
    a("s_lshl_b32 s64, s23, 15")
    a("s_lshl_b32 s65, s12, 7")
    a("s_add_u32 s64, s64, s65")
    a("s_lshr_b32 s65, s14, 1")
    a("s_lshl_b32 s65, s65, 6")
    a("s_add_u32 s64, s64, s65")
    a("s_and_b32 s65, s14, 1")
    a("s_lshl_b32 s65, s65, 4")
    a("s_add_u32 s64, s64, s65")
    def reads(s):
        wb = WB[s & 1]; base = 4 if s < 8 else 13
        for ct in range(2):
            a(f"ds_read_b64_tr_b16 {vr(wb+4*ct,2)}, v{base+ct} offset:{(s&7)*2048}")
            a(f"ds_read_b64_tr_b16 {vr(wb+4*ct+2,2)}, v{base+ct} offset:{(s&7)*2048+1024}")
    reads(0)
    for s in range(16):
        if s == O_.pubo:
            a("s_waitcnt vmcnt(0)")
            st()
            lds_count(a, 12, 8, fo_off(a, FOA))
        if s == 8:
            a("s_barrier")
            a(f"s_add_u32 s60, s61, {FOA}")
            if O_.shp: poll_shared(a, 7, "s60", 40, 0)
            else: poll_flags(a, 7, "s60")
            st()
            o_loads(a, OFA, 0)
        if s + 1 < 16: reads(s + 1)
        if s < 8: a("s_waitcnt lgkmcnt(4)")
        else: a(f"s_waitcnt vmcnt({15 - s}) lgkmcnt({4 if s+1 < 16 else 0})")
        o = (OFB if s < 8 else OFA) + 4*(s & 7)
        for ct in range(2):
            a(f"v_mfma_f32_32x32x16_bf16 {vr(AC[ct],16)}, {vr(WB[s&1]+4*ct,4)}, {vr(o,4)}, {'0' if s == 0 else vr(AC[ct],16)}")
    a("s_nop 10")
    for owner in range(4):
        for q in range(2):
            a(f"ds_write_b128 v6, {vr(AC[owner>>1] + 8*(owner&1) + 4*q, 4)} offset:{owner*8192 + q*1024}")
    a("s_waitcnt lgkmcnt(0)")
    a("s_barrier")
    for src in range(4):
        for q in range(2):
            a(f"ds_read_b128 {vr(16 + src*8 + 4*q, 4)}, v7 offset:{src*2048 + q*1024}")
    a("s_waitcnt lgkmcnt(4)")
    for i in range(8): a(f"v_add_f32 v{16+i}, v{16+i}, v{24+i}")
    a("s_waitcnt lgkmcnt(0)")
    for i in range(8): a(f"v_add_f32 v{32+i}, v{32+i}, v{40+i}")
    for i in range(8): a(f"v_add_f32 v{16+i}, v{16+i}, v{32+i}")
    for i in range(4): a(f"v_cvt_pk_bf16_f32 v{48+i}, v{16+2*i}, v{17+2*i}")
    a("buffer_store_dwordx4 v[48:51], v8, s[24:27], s64 offen " + ["", "sc1", "nt", "sc0 sc1"][O_.outf])

def header():
    hdr = open("gated_mix__mha_block__sliding_block__prompt.s.ref").read().split("\n")
    hdr = [l for l in hdr if l.startswith(";") and "@launch" not in l and "Override" not in l and "grid=ceil" not in l]
    return "\n".join(hdr) + "\n"

def main(out):
    a = Asm(); st = Stamper(a)
    prologue(a, st)
    if O_.codepf:
        a("s_cmp_lg_u32 s52, 3")
        a("s_cbranch_scc1 L_nopf")
        code_prefetch(a)
        a("L_nopf:")
    a("s_cmp_lt_u32 s52, 4")
    a("s_cbranch_scc1 L_comp")
    n0 = st.n
    phase1_loader(a, st)
    st()
    n1 = st.n
    a("s_branch L_p2")
    a("L_comp:")
    st.n = n0
    phase1_comp(a, st)
    assert st.n == n1, (st.n, n1)
    phase2(a, st)
    phase3(a, st)
    if O_.stamps:
        a("s_waitcnt vmcnt(0)"); st(); st.flush()
    a("L_end:")
    a("s_endpgm")
    phase2_slow(a)
    a("L_code_end:")
    body = a.text()
    check_hazards(body)
    txt = header() + "; @launch grid=(256,1,1) block=(512,1,1) lds=163840\n"
    txt += '.amdgcn_target "amdgcn-amd-amdhsa--gfx950"\n.text\n' + body
    txt += '.section .rodata,"a"\n' + kd(NAME, 256, 102)
    open(out, "w").write(txt)

if __name__ == "__main__":
    for o in sys.argv[2:]:
        if o == "st": O_.stamps = True
        elif o == "fb": O_.force_fb = True
        elif "=" in o:
            k, v = o.split("="); setattr(O_, k, int(v))
    main(sys.argv[1])
```

```python
import sys, struct
from asmlib import *

QF = 0
GO = (16 << 20) + 0x10000
KV = 4 << 20
OF = 12 << 20
FL = 16 << 20
FA = FL
FB = FL + 0x1000
FOA = FL + 0x2000
FOB = FL + 0x3000
TS = 20 << 20
WS_BYTES = 24 << 20
LOG2E = 1.4426950408889634
NEGINF = 0xff800000
def f2u(x): return struct.unpack("<I", struct.pack("<f", x))[0]
NAME = "gated_mix__mha_block__sliding_block__prompt_kernel"

class Opt:
    stamps = False; force_fb = False; prio = True; codepf = True; pubz = 20; D = 4; wopf = True; n1 = 3; pr1 = 2; pr0 = 1; shp = 1; slp = 2; hold = 1; tlb = 0; pubo = 3; outf = 2
O_ = Opt()
sc = "sc1"

GW_LDS = 153600
MERGE_LDS = 131072; MBLK = 2176
CTL = 163840 - 64
SPIN = 1 << 18

class Stamper:
    def __init__(self, a): self.a = a; self.n = 0; self.kid = 0
    def __call__(self):
        if not O_.stamps: return
        assert self.n < 13
        self.a(f"s_memtime s[{72+2*self.n}:{73+2*self.n}]")
        if self.n == 0: self.a("s_memrealtime s[98:99]")
        self.a("s_waitcnt lgkmcnt(0)")
        self.n += 1
    def flush(self):
        if not O_.stamps: return
        a = self.a
        a("s_memrealtime s[100:101]")
        a("s_lshl_b32 s62, s2, 3")
        a("s_add_u32 s62, s62, s52")
        a("s_lshl_b32 s62, s62, 6")
        a(f"s_add_u32 s62, s62, {TS}")
        a("v_mov_b32 v250, 0")
        a("s_waitcnt lgkmcnt(0)")
        for i, sg in enumerate([f"s{72+2*i}" for i in range(self.n)] + ["-1"]*(13-self.n) + [str(self.n), "s98", "s100"]):
            a(f"v_mov_b32 v252, {sg}")
            a(f"buffer_store_dword v252, v250, s[16:19], s62 offen offset:{4*i}")
        a("s_waitcnt vmcnt(0)")

class VM:
    def __init__(self, a): self.a = a; self.q = []; self.done = 0
    def issue(self, tag): self.q.append(tag)
    def wait(self, tag):
        last = max(i for i, t in enumerate(self.q) if t == tag)
        if last + 1 > self.done:
            self.done = last + 1
            n = len(self.q) - last - 1
            assert n < 64
            self.a(f"s_waitcnt vmcnt({n})")

def lds_count(a, cnt_off, target=None, flag_soff_code=None, inc=1):
    a(f"v_mov_b32 v250, {CTL}")
    a(f"v_mov_b32 v251, {inc}")
    a("s_mov_b64 exec, 1")
    if flag_soff_code is None:
        a(f"ds_add_u32 v250, v251 offset:{cnt_off}")
    else:
        lab = a.label("pub")
        a(f"ds_add_rtn_u32 v251, v250, v251 offset:{cnt_off}")
        a("v_mov_b32 v252, s30")
        a("v_mov_b32 v253, s31")
        a("s_waitcnt lgkmcnt(0)")
        a("v_readfirstlane_b32 s59, v251")
        a("v_mov_b32 v250, 0")
        a("s_and_b32 s59, s59, 0xff")
        a(f"s_cmp_lg_u32 s59, {target-1}")
        a(f"s_cbranch_scc1 {lab}")
        flag_soff_code()
        a("buffer_store_dwordx2 v[252:253], v250, s[16:19], s59 offen sc1")
        a(f"{lab}:")
    a("s_mov_b64 exec, -1")

def lds_wait(a, cnt_off, target, four=False):
    lab = a.label("lw")
    if four:
        a("v_and_b32 v250, 3, v1")
        a("v_lshlrev_b32 v250, 2, v250")
        a(f"v_add_u32 v250, {CTL}, v250")
    else:
        a(f"v_mov_b32 v250, {CTL}")
    a(f"s_mov_b32 s59, {SPIN*4}")
    a(f"{lab}:")
    a(f"ds_read_b32 v251, v250 offset:{cnt_off}")
    a("s_waitcnt lgkmcnt(0)")
    a(f"v_cmp_gt_u32 vcc, {target}, v251")
    a(f"s_cbranch_vccz {lab}_ok")
    a("s_sleep 1")
    a("s_sub_u32 s59, s59, 1")
    a("s_cmp_lg_u32 s59, 0")
    a(f"s_cbranch_scc1 {lab}")
    a(f"{lab}_ok:")

def poll_shared(a, mask, soff, word, wave):
    lab = a.label("ps")
    a(f"s_cmp_lg_u32 s52, {wave}")
    a(f"s_cbranch_scc1 {lab}_w")
    poll_flags(a, mask, soff)
    lds_count(a, word)
    a(f"s_branch {lab}_d")
    a(f"{lab}_w:")
    lds_wait(a, word, 1)
    a(f"{lab}_d:")

def poll_flags(a, mask, soff):
    lab = a.label("poll")
    a(f"v_and_b32 v250, {mask}, v1")
    a("v_lshlrev_b32 v250, 3, v250")
    a(f"s_mov_b32 s59, {SPIN}")
    a(f"{lab}:")
    a(f"buffer_load_dwordx2 v[252:253], v250, s[16:19], {soff} offen sc1")
    a("s_waitcnt vmcnt(0)")
    a("v_cmp_ne_u64 vcc, s[30:31], v[252:253]")
    a(f"s_cbranch_vccz {lab}_ok")
    a(f"s_sleep {O_.slp}")
    a("s_sub_u32 s59, s59, 1")
    a("s_cmp_lg_u32 s59, 0")
    a(f"s_cbranch_scc1 {lab}")
    a(f"{lab}_ok:")

def tag_issue(a):
    a("v_mov_b32 v249, 0")
    a("buffer_load_dwordx2 v[254:255], v249, s[20:23], 0 offen sc1")
def tag_finish(a):
    lab = a.label("tag")
    a(f"s_mov_b32 s59, {SPIN}")
    a(f"{lab}:")
    a("v_cmp_eq_u32 vcc, 0, v255")
    a(f"s_cbranch_vccz {lab}_ok")
    a("s_sleep 1")
    a("buffer_load_dwordx2 v[254:255], v249, s[20:23], 0 offen sc1")
    a("s_waitcnt vmcnt(0)")
    a("s_sub_u32 s59, s59, 1")
    a("s_cmp_lg_u32 s59, 0")
    a(f"s_cbranch_scc1 {lab}")
    a(f"{lab}_ok:")
    a("v_readfirstlane_b32 s30, v254")
    a("v_readfirstlane_b32 s31, v255")

def flagoff(a, base):
    def f():
        a("s_lshl_b32 s59, s55, 8")
        a("s_lshl_b32 s60, s3, 3")
        a("s_add_u32 s59, s59, s60")
        a(f"s_add_u32 s59, s59, {base}")
    return f

XS = 16; WR = 144; ACC = [176, 192, 208, 224]; GR = 240

def prologue(a, st):
    a(f".globl {NAME}\n.p2align 8\n.type {NAME},@function\n{NAME}:")
    a("s_cmp_ge_u32 s2, 256")
    a("s_cbranch_scc1 L_end")
    a("s_load_dwordx16 s[32:47], s[0:1], 0")
    a("s_load_dwordx4 s[48:51], s[0:1], 64")
    a("v_lshrrev_b32 v2, 6, v0")
    a("v_and_b32 v1, 63, v0")
    a("v_readfirstlane_b32 s52, v2")
    a("v_lshlrev_b32 v2, 4, v1")
    a("s_and_b32 s53, s2, 7")
    a("s_lshr_b32 s54, s2, 3")
    st()
    a("s_and_b32 s55, s53, 1")
    a("s_lshl_b32 s55, s55, 2")
    a("s_and_b32 s56, s54, 3")
    a("s_add_u32 s55, s55, s56")
    a("s_lshr_b32 s56, s53, 1")
    a("s_lshl_b32 s56, s56, 2")
    a("s_bfe_u32 s57, s54, 0x20002")
    a("s_add_u32 s56, s56, s57")
    a("s_lshr_b32 s57, s54, 4")
    a("s_lshl_b32 s3, s56, 1")
    a("s_add_u32 s3, s3, s57")
    a("s_lshl_b32 s58, s55, 1")
    a("s_add_u32 s58, s58, s3")
    a("s_and_b32 s58, s58, 7")
    a("s_and_b32 s68, s52, 3")

def phase1_loader(a, st):
    a("v_lshrrev_b32 v5, 3, v1")
    a("s_lshl_b32 s59, s68, 3")
    a("v_add_u32 v5, s59, v5")
    a("v_and_b32 v7, 7, v1")
    a("v_bfe_u32 v6, v5, 1, 3")
    a("v_xor_b32 v6, v6, v7")
    a("v_lshlrev_b32 v3, 10, v5")
    a("v_lshl_add_u32 v3, v6, 4, v3")
    a("s_lshl_b32 s59, s56, 17")
    a("v_add_u32 v3, s59, v3")
    a("v_mul_u32_u24 v4, 3072, v5")
    a("v_bfe_u32 v6, v1, 4, 1")
    a("v_lshlrev_b32 v6, 2, v6")
    a("v_xor_b32 v6, v6, v7")
    a("v_lshl_add_u32 v4, v6, 4, v4")
    a("s_lshl_b32 s59, s55, 7")
    a("v_add_u32 v4, s59, v4")
    a("s_lshl_b32 s59, s57, 10")
    a("s_add_u32 s59, s59, 1024")
    a("v_add_u32 v9, s59, v4")
    a("v_mov_b32 v248, 0")
    a("s_lshl_b32 s71, s68, 10")
    a("s_mov_b32 s60, s58")
    a("s_mov_b32 s63, 0")
    a("s_cmp_lg_u32 s57, 0")
    a("s_waitcnt lgkmcnt(0)")
    a("s_cselect_b32 s24, s40, s34")
    a("s_cselect_b32 s25, s41, s35")
    a(f"s_mov_b32 s26, {hex(512*1536*2)}")
    a("s_mov_b32 s27, 0x00020000")
    srd(a, 8, 34, 512*1536*2)
    srd(a, 4, 32, 2 << 20)
    a("L_ld_loop:")
    a("s_lshl_b32 s61, s60, 7")
    a(f"s_mul_i32 s62, s60, {64*3072}")
    for i in range(2):
        a(f"s_add_u32 m0, s71, {16384 + i*4096}")
        a(f"s_add_u32 s70, s62, {i*32*3072}")
        a("buffer_load_dwordx4 v9, s[8:11], s70 offen lds")
        a(f"s_add_u32 m0, s71, {24576 + i*4096}")
        a("s_nop 0")
        a("buffer_load_dwordx4 v4, s[24:27], s70 offen lds")
    for i in range(4):
        a(f"s_add_u32 m0, s71, {i*4096}")
        a(f"s_add_u32 s70, s61, {i*32768}")
        a("buffer_load_dwordx4 v3, s[4:7], s70 offen lds")
    a("s_add_u32 s60, s60, 1")
    a("s_and_b32 s60, s60, 7")
    a("s_add_u32 s71, s71, 32768")
    a("s_and_b32 s71, s71, 0x1ffff")
    a("s_add_u32 s63, s63, 1")
    a("s_cmp_eq_u32 s63, 1")
    a("s_cbranch_scc1 L_ld_loop")
    a("s_waitcnt vmcnt(8)")
    a("s_barrier")
    a("s_cmp_lt_u32 s63, 8")
    a("s_cbranch_scc1 L_ld_loop")
    srd(a, 12, 40, 512*1536*2)
    srd(a, 16, 50, WS_BYTES)
    srd(a, 20, 48, 256)
    def kvb(j):
        a(f"s_mul_i32 s62, s60, {64*3072}")
        for i in range(2):
            a(f"s_add_u32 m0, s71, {j*8192 + i*4096}")
            a(f"s_add_u32 s70, s62, {i*32*3072}")
            a("buffer_load_dwordx4 v9, s[12:15], s70 offen lds")
        a("s_add_u32 s60, s60, 1")
        a("s_and_b32 s60, s60, 7")
    for j in range(4): kvb(j)
    a("s_lshl_b32 s59, s68, 2")
    a(f"s_add_u32 s59, s59, {CTL + 16}")
    a("v_mov_b32 v10, s59")
    a("s_waitcnt vmcnt(8)")
    a("s_barrier")
    st()
    if O_.hold == 2:
        a("s_waitcnt vmcnt(0)")
        a("v_mov_b32 v11, 1")
        a("ds_write_b32 v10, v11")
    if O_.hold: lds_wait(a, 4 if O_.hold < 3 else 0, 4)
    for j in range(4, 8): kvb(j)
    a("s_waitcnt vmcnt(8)")
    tag_issue(a)
    a("v_mov_b32 v11, 1")
    a("ds_write_b32 v10, v11")
    st()
    a("s_waitcnt vmcnt(0)")
    a("v_mov_b32 v11, 2")
    a("ds_write_b32 v10, v11")
    st()
    tag_finish(a)

def code_prefetch(a):
    a("s_getpc_b64 s[28:29]")
    a("L_pcref:")
    a("s_lshl_b32 s59, s54, 10")
    a("v_lshlrev_b32 v10, 7, v1")
    a("v_add_u32 v10, s59, v10")
    a("v_cmp_gt_u32 vcc, L_code_end-L_pcref, v10")
    a("s_and_b64 vcc, vcc, 0xff")
    a("v_mov_b32 v11, s29")
    a("s_and_saveexec_b64 s[26:27], vcc")
    a("s_cbranch_execz L_pf_skip")
    a("v_add_co_u32 v10, vcc, s28, v10")
    a("s_nop 1")
    a("v_addc_co_u32 v11, vcc, 0, v11, vcc")
    a("global_load_dword v247, v[10:11], off")
    a("L_pf_skip:")
    a("s_mov_b64 exec, s[26:27]")

def comp_setup(a):
    a("s_waitcnt lgkmcnt(0)")
    srd(a, 20, 48, 256)
    a("s_cmp_lg_u32 s52, 0")
    a("s_cbranch_scc1 L_notw0")
    srd(a, 24, 44, 1024)
    a("s_lshl_b32 s59, s58, 7")
    a("v_add_u32 v5, s59, v2")
    a("v_and_b32 v5, 0x3ff, v5")
    a(f"s_mov_b32 m0, {GW_LDS}")
    a(f"v_mov_b32 v250, {CTL}")
    a("buffer_load_dwordx4 v5, s[24:27], 0 offen lds")
    for i in range(4): a(f"v_mov_b32 v{252+i}, 0")
    a("ds_write_b128 v250, v[252:255]")
    a("ds_write_b128 v250, v[252:255] offset:16")
    a("ds_write_b128 v250, v[252:255] offset:32")
    a("s_cmp_lg_u32 s2, 0")
    a("s_cbranch_scc1 L_notag")
    a("s_memrealtime s[28:29]")
    a("s_waitcnt lgkmcnt(0)")
    a("s_or_b32 s29, s29, 0x40000000")
    a("v_mov_b32 v254, s28")
    a("v_mov_b32 v255, s29")
    a("s_mov_b64 exec, 1")
    a("buffer_store_dwordx2 v[254:255], v252, s[20:23], 0 offen sc1")
    a("s_mov_b64 exec, -1")
    a("L_notag:")
    a("s_waitcnt vmcnt(0) lgkmcnt(0)")
    a("L_notw0:")
    if O_.tlb:
        a("s_cmp_lg_u32 s52, 2")
        a("s_cbranch_scc1 L_notlb")
        srd(a, 16, 50, WS_BYTES)
        a("v_mul_u32_u24 v10, 0x44000, v1")
        a("buffer_load_dword v247, v10, s[16:19], 0 offen sc1")
        srd(a, 24, 46, 2 << 20)
        a("v_lshlrev_b32 v10, 18, v1")
        a("buffer_load_dword v247, v10, s[24:27], 0 offen sc1")
        a("L_notlb:")
    a("v_and_b32 v10, 31, v1")
    a("s_lshl_b32 s59, s68, 12")
    a("v_lshlrev_b32 v11, 7, v10")
    a("v_add_u32 v11, s59, v11")
    a("v_bfe_u32 v12, v1, 1, 3")
    a("v_lshrrev_b32 v13, 5, v1")
    a("v_xor_b32 v12, v12, v13")
    a("v_lshl_add_u32 v5, v12, 4, v11")
    a("v_xor_b32 v6, 32, v5")
    a("v_xor_b32 v7, 64, v5")
    a("v_xor_b32 v8, 96, v5")
    a("v_bfe_u32 v10, v1, 2, 2")
    a("v_lshl_add_u32 v10, v13, 3, v10")
    a("v_lshlrev_b32 v9, 7, v10")
    a("v_bfe_u32 v10, v1, 3, 1")
    a("v_lshl_add_u32 v9, v10, 6, v9")
    a("v_bfe_u32 v10, v1, 4, 1")
    a("v_lshl_add_u32 v9, v10, 5, v9")
    a("v_lshlrev_b32 v3, 17, v10")
    a("v_and_b32 v10, 3, v1")
    a("v_lshl_add_u32 v9, v10, 3, v9")
    a("v_xor_b32 v4, 64, v9")
    a("s_lshl_b32 s69, s55, 8")
    a("s_lshl_b32 s59, s56, 2")
    a("s_add_u32 s59, s59, s68")
    a("s_add_u32 s59, s59, s69")
    a("s_lshl_b32 s70, s59, 11")
    a("v_lshl_add_u32 v3, v13, 8, v3")
    a("v_and_b32 v10, 15, v1")
    a("v_lshl_add_u32 v3, v10, 4, v3")
    a(f"s_mov_b32 s69, {hex(f2u(0.25*LOG2E))}")
    a("v_lshlrev_b32 v0, 4, v13")
    a(f"v_add_u32 v0, {GW_LDS}, v0")
    a("v_mov_b32 v14, 0")
    a("v_mov_b32 v15, 0")
    a("s_lshr_b32 s71, s70, 1")
    srd(a, 16, 50, WS_BYTES)

def pass_a(a, par, st):
    isv = par == 1; gate = False
    def reads(z):
        j = z // 4; s_ = z % 4
        if s_ == 0:
            a("s_barrier")
            if j == 7: st()
            if j and j % 2 == 0:
                for r in (4, 5, 6, 7, 8, 9): a(f"v_xor_b32 v{r}, 0x10000, v{r}")
        so = (j & 1) * 32768
        L = [f"ds_read_b128 {vr(XS + 4*z, 4)}, v{5 + s_} offset:{so}"]
        wr = WR + 16*(z % 2)
        for m in range(4):
            o = so + 16384 + (m >> 1)*8192 + s_*2048
            L.append(f"ds_read_b64_tr_b16 {vr(wr + 4*m, 2)}, v{4 if m & 1 else 9} offset:{o}")
            L.append(f"ds_read_b64_tr_b16 {vr(wr + 4*m + 2, 2)}, v{4 if m & 1 else 9} offset:{o + 512}")
        if gate: L.append(f"ds_read_b128 {vr(GR + 4*(z % 2), 4)}, v0 offset:{z*32}")
        return L
    for x in reads(0): a(x)
    for z in range(32):
        if z == 16: tag_issue(a)
        a("s_waitcnt lgkmcnt(0)")
        wr = WR + 16*(z % 2); x = vr(XS + 4*z, 4)
        R = None
        for m in range(4):
            w = vr(wr + 4*m, 4); v_ = isv and m < 2
            c = "0" if z == 0 else vr(ACC[m], 16)
            a(f"v_mfma_f32_32x32x16_bf16 {vr(ACC[m],16)}, {x if v_ else w}, {w if v_ else x}, {c}")
            if R is None: R = reads(z + 1) if z + 1 < 32 else []
            for y in R[:4]: a(y)
            R = R[4:]
            if gate and m >= 2:
                for i in (2*(m-2), 2*(m-2)+1): a(f"v_dot2c_f32_bf16 v{14 + (i & 1)}, v{XS+4*z+i}, v{GR+4*(z%2)+i}")
    a("v_xor_b32 v4, 0x10000, v4")
    a("v_xor_b32 v9, 0x10000, v9")

def pass_b(a, isv, waits, gate):
    GB4 = 208
    nr = 5 if gate else 4
    def reads(z):
        if z in waits: waits[z]()
        wr = WR + 8*(z % 4)
        L = []
        for ft in range(2):
            L.append(f"ds_read_b64_tr_b16 {vr(wr + 4*ft, 2)}, v{4 if ft else 9} offset:{z*2048}")
            L.append(f"ds_read_b64_tr_b16 {vr(wr + 4*ft + 2, 2)}, v{4 if ft else 9} offset:{z*2048 + 512}")
        if gate: L.append(f"ds_read_b128 {vr(GB4 + 4*(z % 4), 4)}, v0 offset:{z*32}")
        return L
    PF = 3
    for z in range(PF):
        for x in reads(z): a(x)
    for z in range(32):
        R = reads(z + PF) if z + PF < 32 else []
        a(f"s_waitcnt lgkmcnt({nr * (min(z + PF, 32) - z - 1)})")
        wr = WR + 8*(z % 4); x = vr(XS + 4*z, 4)
        for ft in range(2):
            w = vr(wr + 4*ft, 4)
            c = "0" if z == 0 else vr(ACC[ft], 16)
            a(f"v_mfma_f32_32x32x16_bf16 {vr(ACC[ft],16)}, {x if isv else w}, {w if isv else x}, {c}")
            if gate:
                for i in (2*ft, 2*ft+1): a(f"v_dot2c_f32_bf16 v{14 + (i & 1)}, v{XS+4*z+i}, v{GB4+4*(z%4)+i}")
            for y in (R[:2] if ft == 0 else R[2:]): a(y)

def kv_epilogue(a, isv, acc, b):
    for ft in range(2):
        c = acc[ft]
        for i in range(8): a(f"v_cvt_pk_bf16_f32 v{c+i}, v{c+2*i}, v{c+2*i+1}")
        if not isv:
            for e in range(2):
                a(f"s_add_u32 s59, s70, {KV + (b*32 + 2*ft + e)*131072}")
                a(f"buffer_store_dwordx4 {vr(c+4*e,4)}, v2, s[16:19], s59 offen {sc}")
        else:
            a(f"s_add_u32 s59, s70, {KV + (b*32 + 2*ft)*131072}")
            a(f"buffer_store_dwordx4 {vr(c,4)}, v3, s[16:19], s59 offen offset:1024 {sc}")
            a(f"buffer_store_dwordx4 {vr(c+4,4)}, v3, s[16:19], s59 offen offset:1536 {sc}")

def q_epilogue(a, b):
    for ft in range(2):
        c = ACC[2 + ft]
        for i in range(16): a(f"v_mul_f32 v{c+i}, s69, v{c+i}")
        for i in range(8): a(f"v_cvt_pk_bf16_f32 v{c+i}, v{c+2*i}, v{c+2*i+1}")
        for e in range(2):
            a(f"s_add_u32 s59, s71, {QF + (b*32 + 2*ft + e)*65536}")
            a(f"buffer_store_dwordx4 {vr(c+4*e,4)}, v2, s[16:19], s59 offen {sc}")

DKV = 232
DQ = [208, 224]
DADR = 248
def phase1_comp(a, st):
    comp_setup(a)
    n0 = st.n
    lw = lambda lvl: (lambda: lds_wait(a, 16, lvl, four=True))
    a("s_cmp_lg_u32 s57, 0")
    a("s_cbranch_scc1 L_p1_v")
    for par in (0, 1):
        if par: a("L_p1_v:"); st.n = n0
        pass_a(a, par, st)
        a("s_nop 7")
        kv_epilogue(a, par == 1, ACC[:2], 0)
        if par == 0: q_epilogue(a, 0)
        lds_count(a, 4)
        st()
        if par == 1:
            for ft in range(2):
                c = ACC[2 + ft]
                for i in range(16): a(f"v_mul_f32 v{c+i}, s69, v{c+i}")
                for i in range(8): a(f"v_cvt_pk_bf16_f32 v{c+i}, v{c+2*i}, v{c+2*i+1}")
        else:
            a("v_mov_b32 v10, 0")
            a("v_mov_b32 v11, 0")
            def gr(bt):
                for i in range(4): a(f"ds_read_b128 {vr(WR + 16*(bt & 1) + 4*i, 4)}, v0 offset:{(4*bt + i)*32}")
            gr(0)
            for bt in range(8):
                if bt < 7: gr(bt + 1)
                a(f"s_waitcnt lgkmcnt({4 if bt < 7 else 0})")
                for i in range(16): a(f"v_dot2c_f32_bf16 v{(14, 15, 10, 11)[i & 3]}, v{XS + 16*bt + i}, v{WR + 16*(bt & 1) + i}")
        a("s_waitcnt vmcnt(0)")
        st()
        tag_finish(a)
        lds_count(a, 0, 4, flagoff(a, FA))
        if O_.prio: a("s_setprio 3")
        pass_b(a, par == 1, {0: lw(1), 16: lw(2)}, False)
        if par == 0:
            a(f"v_and_b32 v{DADR}, 31, v1")
            a(f"v_lshlrev_b32 v{DADR}, 2, v{DADR}")
            a("v_add_f32 v10, v10, v11")
            a("v_add_f32 v14, v14, v15")
            a("v_add_f32 v14, v14, v10")
            crossop(a, "v_add_f32", 14, 15)
            a(f"v_mul_f32 v14, {hex(f2u(-LOG2E))}, v14")
            a("v_exp_f32 v14, v14")
            a("s_nop 0")
            a("v_add_f32 v14, 1.0, v14")
            a(f"v_rcp_f32 v{DQ[0]}, v14")
        else:
            a(f"v_mov_b32 v{DADR}, v3")
            a("s_nop 10")
        for ft in range(2):
            for i in range(8): a(f"v_cvt_pk_bf16_f32 v{DKV+8*ft+i}, v{ACC[ft]+2*i}, v{ACC[ft]+2*i+1}")
        if par == 0: a("s_branch L_p1_end")
    a("L_p1_end:")
    a("s_mov_b32 s0, s70")
    a("s_mov_b32 s1, s57")
    a("s_lshl_b32 s59, s56, 2")
    a("s_add_u32 s59, s59, s68")
    a("s_lshl_b32 s59, s59, 7")
    a("s_lshl_b32 s60, s55, 13")
    a("s_add_u32 s33, s59, s60")
    st()

def deferred_stores(a):
    a("s_cmp_lg_u32 s1, 0")
    a("s_cbranch_scc1 L_def_v")
    for i in range(4):
        a(f"s_add_u32 s59, s0, {KV + (32 + i)*131072}")
        a(f"buffer_store_dwordx4 {vr(DKV+4*i,4)}, v2, s[16:19], s59 offen {sc}")
    a(f"s_add_u32 s59, s33, {GO}")
    a(f"buffer_store_dword v{DQ[0]}, v{DADR}, s[16:19], s59 offen {sc}")
    a("s_branch L_def_done")
    a("L_def_v:")
    for ft in range(2):
        a(f"s_add_u32 s59, s0, {KV + (32 + 2*ft)*131072}")
        a(f"buffer_store_dwordx4 {vr(DKV+8*ft,4)}, v{DADR}, s[16:19], s59 offen offset:1024 {sc}")
        a(f"buffer_store_dwordx4 {vr(DKV+8*ft+4,4)}, v{DADR}, s[16:19], s59 offen offset:1536 {sc}")
    a("s_lshr_b32 s60, s0, 1")
    for i in range(4):
        a(f"s_add_u32 s59, s60, {QF + (32 + i)*65536}")
        a(f"buffer_store_dwordx4 {vr(DQ[i>>1]+4*(i&1),4)}, v2, s[16:19], s59 offen {sc}")
    a("L_def_done:")

Q0 = 8; Q1 = 12; QB = 16
SB = [20, 36]; P = 52; OA = [60, 76]; CF = 92; CD = 108; CR = 124
NA = 140; NB = 141; GA = 142; GB_ = 143; VK = 144; VV = 145; NI = 146; NBF = 147; MX = 148; VKB = 149; VVB = 150; T0_ = 151; T1_ = 5; VMG = 6; VWO = 7
KVB = [152 + 12*i for i in range(4)]; OB = 200; CFB = 216

def kv_loads(a, buf, vk, vv, soff, off):
    a(f"buffer_load_dwordx4 {vr(buf,4)}, v{vk}, s[16:19], {soff} offen offset:{off} {sc}")
    a("s_mov_b64 exec, s[24:25]")
    a(f"buffer_load_dwordx4 {vr(buf+4,4)}, v{vv}, s[16:19], {soff} offen offset:{off+1024} {sc}")
    a(f"buffer_load_dwordx4 {vr(buf+8,4)}, v{vv}, s[16:19], {soff} offen offset:{off+1536} {sc}")
    a("s_mov_b64 exec, -1")

def tstep(a, S, Sn, pv1, qk, pv0, after_pv1=None, before_qk=None, after_pv0=None):
    def E(i): a(f"v_exp_f32 v{S+i}, v{S+i}")
    def C(i): a(f"v_cvt_pk_bf16_f32 v{P+i}, v{S+2*i}, v{S+2*i+1}")
    E(0); E(1)
    if pv1: a(f"v_mfma_f32_32x32x16_bf16 {vr(pv1[0],16)}, {vr(pv1[1],4)}, {vr(P+4,4)}, {vr(pv1[0],16)}")
    if after_pv1: after_pv1()
    E(2); E(3); C(0); E(4); E(5); C(1)
    if before_qk: before_qk()
    if qk: a(f"v_mfma_f32_32x32x16_bf16 {vr(Sn,16)}, {vr(qk[0],4)}, {vr(qk[1],4)}, {vr(qk[2],16)}")
    E(6); E(7); C(2); E(8); E(9); C(3); E(10); E(11)
    a(f"v_mfma_f32_32x32x16_bf16 {vr(pv0[0],16)}, {vr(pv0[1],4)}, {vr(P,4)}, {'0' if pv0[2] else vr(pv0[0],16)}")
    if after_pv0: after_pv0()
    C(4); E(12); E(13); C(5); E(14); E(15); C(6); C(7)

def finalize(a, O, gate, flag_sgpr, fb_label, sofs):
    a(f"v_rcp_f32 v{T0_}, v{O+8}")
    a(f"v_cmp_gt_f32 s[60:61], s26, v{O+8}")
    a(f"v_mul_f32 v{T0_}, v{gate}, v{T0_}")
    for i in range(8): a(f"v_mul_f32 v{O+i}, v{T0_}, v{O+i}")
    a(f"v_add_f32 v{T1_}, |v{O}|, |v{O+1}|")
    for i in range(2, 8): a(f"v_add_f32 v{T1_}, v{T1_}, |v{O+i}|")
    a(f"v_cmp_gt_f32 s[62:63], s27, v{T1_}")
    for i in range(4): a(f"v_cvt_pk_bf16_f32 v{O+12+i}, v{O+2*i}, v{O+2*i+1}")
    a("s_and_b64 s[60:61], s[60:61], s[62:63]")
    a("s_cmp_eq_u64 s[60:61], -1")
    a(f"s_cselect_b32 s60, 1, {flag_sgpr}")
    a("s_cmp_eq_u32 s60, 0")
    a(f"s_cbranch_scc1 {fb_label}")
    a(f"buffer_store_dwordx4 {vr(O+12,4)}, v2, s[16:19], {sofs} offen {sc}")

def crossop(a, op, reg, tmp):
    a(f"v_mov_b32 v{tmp}, v{reg}")
    a("s_nop 1")
    a(f"v_permlane32_swap_b32 v{reg}, v{tmp}")
    a("s_nop 1")
    a(f"{op} v{reg}, v{reg}, v{tmp}")

def p3_roles(a):
    a("s_lshl_b32 s15, s53, 2")
    a("s_and_b32 s59, s54, 3")
    a("s_add_u32 s15, s15, s59")
    a("s_lshr_b32 s12, s54, 2")
    a("s_and_b32 s13, s52, 1")
    a("s_lshr_b32 s14, s52, 1")
    a("s_lshl_b32 s23, s15, 1")
    a("s_add_u32 s23, s23, s13")
    srd(a, 4, 36, 512*512*2)
    srd(a, 8, 42, 512*512*2)
    a("s_lshl_b32 s20, s14, 17")
    a("s_lshl_b32 s59, s13, 13")
    a("s_add_u32 s20, s20, s59")
    a("s_lshl_b32 s59, s12, 7")
    a("s_add_u32 s20, s20, s59")
    a("s_lshl_b32 s21, s14, 14")
    a("s_lshl_b32 s59, s13, 10")
    a("s_add_u32 s21, s21, s59")
    a(f"v_lshrrev_b32 v{T0_}, 3, v1")
    a(f"v_lshlrev_b32 v{VWO}, 10, v{T0_}")
    a(f"v_bfe_u32 v{T0_}, v1, 4, 1")
    a(f"v_lshlrev_b32 v{T0_}, 2, v{T0_}")
    a(f"v_and_b32 v{T1_}, 7, v1")
    a(f"v_xor_b32 v{T0_}, v{T0_}, v{T1_}")
    a(f"v_lshl_add_u32 v{VWO}, v{T0_}, 4, v{VWO}")

def wo_dma(a, i):
    a(f"s_add_u32 s59, s12, {i}")
    a("s_and_b32 s59, s59, 7")
    a("s_lshl_b32 s59, s59, 14")
    a(f"s_add_u32 m0, s21, {i*2048}")
    a("s_add_u32 s59, s59, s20")
    a(f"buffer_load_dwordx4 v{VWO}, s[8:11], s59 offen lds")
    a(f"s_add_u32 m0, s21, {65536 + i*2048}")
    a("s_nop 0")
    a(f"buffer_load_dwordx4 v{VWO}, s[4:7], s59 offen lds")

def o_loads(a, dst, b):
    a("s_lshl_b32 s63, s14, 19")
    a("s_lshl_b32 s59, s23, 10")
    a("s_add_u32 s63, s63, s59")
    a(f"s_add_u32 s63, s63, {OF + b*32*65536}")
    for i in range(8):
        a(f"s_add_u32 s59, s12, {i}")
        a("s_and_b32 s59, s59, 7")
        a("s_lshl_b32 s59, s59, 16")
        a("s_add_u32 s59, s59, s63")
        a(f"buffer_load_dwordx4 {vr(dst+4*i,4)}, v2, s[16:19], s59 offen {sc}")

def fo_off(a, base):
    def f():
        a("s_lshl_b32 s59, s54, 7")
        a("s_lshl_b32 s60, s53, 3")
        a("s_add_u32 s59, s59, s60")
        a(f"s_add_u32 s59, s59, {base}")
    return f

def phase2(a, st):
    D = O_.D
    a("L_p2:")
    a("s_lshl_b32 s56, s53, 2")
    a("s_add_u32 s69, s68, s56")
    a("s_lshr_b32 s56, s52, 2")
    a("s_lshl_b32 s57, s54, 1")
    a("s_add_u32 s58, s57, s56")
    a("s_lshl_b32 s59, s69, 6")
    a("s_add_u32 s65, s59, s58")
    a("s_lshl_b32 s65, s65, 10")
    a("s_add_u32 s64, s59, s57")
    a("s_lshl_b32 s64, s64, 10")
    a("s_mov_b32 s24, 0x0000ffff")
    a("s_mov_b32 s25, 0x0000ffff")
    p3_roles(a)
    a("s_mov_b32 s60, 0x00110000")
    a("s_mov_b32 s61, 0x00110000")
    a(f"v_mov_b32 v{T0_}, 0x3f803f80")
    a(f"v_cndmask_b32 v{T0_}, 0, v{T0_}, s[60:61]")
    for b in KVB[:D]:
        for i in range(8): a(f"v_mov_b32 v{b+4+i}, v{T0_}")
    a("s_lshl_b32 s60, s69, 17")
    a(f"s_add_u32 s60, s60, {KV}")
    a(f"v_add_u32 v{VK}, s60, v2")
    a(f"v_lshrrev_b32 v{T0_}, 5, v1")
    a(f"v_lshlrev_b32 v{T0_}, 8, v{T0_}")
    a(f"v_and_b32 v{T1_}, 15, v1")
    a(f"v_lshl_add_u32 v3, v{T1_}, 4, v{T0_}")
    a(f"v_add_u32 v{VV}, s60, v3")
    a(f"s_add_u32 s60, s60, {32*131072}")
    a(f"v_add_u32 v{VKB}, s60, v2")
    a(f"v_add_u32 v{VVB}, s60, v3")
    a(f"s_mov_b32 s26, {hex(f2u(2.0**64) if not O_.force_fb else f2u(0.5))}")
    a("s_mov_b32 s27, 0x7f800000")
    a("s_mov_b32 s28, 0")
    a("s_mov_b32 s29, 0")
    a(f"v_mov_b32 v{NI}, {hex(NEGINF)}")
    for r in range(16): a(f"v_mov_b32 v{OA[0]+r}, 0")
    for r in range(16): a(f"v_mov_b32 v{OA[1]+r}, 0")
    a(f"v_mov_b32 v{NA}, 0")
    a(f"v_mov_b32 v{NB}, 0")
    a("s_lshl_b32 s22, s54, 12")
    a("s_lshl_b32 s60, s56, 16")
    a("s_add_u32 s22, s22, s60")
    a("s_and_b32 s66, s22, 0x1ffff")
    a(f"s_mov_b32 s67, {O_.n1}")
    a("s_mov_b32 s70, 0")
    a("s_cmp_lg_u32 s56, 0")
    a(f"s_cselect_b32 s71, -1, {O_.n1 - 1}")
    a("s_lshl_b32 s60, s53, 8")
    a(f"s_add_u32 s60, s60, {FA}")
    st()
    if O_.shp: poll_shared(a, 31, "s60", 36, 4)
    else: poll_flags(a, 31, "s60")
    st()
    a(f"buffer_load_dwordx4 {vr(Q0,4)}, v2, s[16:19], s64 offen {sc}")
    a(f"buffer_load_dwordx4 {vr(Q1,4)}, v2, s[16:19], s64 offen offset:1024 {sc}")
    a("s_lshl_b32 s60, s57, 11")
    a(f"buffer_load_dwordx4 {vr(SB[1],4)}, v{VK}, s[16:19], s60 offen {sc}")
    a(f"buffer_load_dwordx4 {vr(SB[1]+4,4)}, v{VK}, s[16:19], s60 offen offset:2048 {sc}")
    a("L_A_entry:")
    for n in range(D - 1):
        if n and n % 2 == 0:
            a("s_add_u32 s66, s66, 4096")
            a("s_and_b32 s66, s66, 0x1ffff")
        kv_loads(a, KVB[n], VK, VV, "s66", 2048 * (n % 2))
    for r in range(4): a(f"v_mov_b32 v{P+4+r}, 0")
    a(f"s_waitcnt vmcnt({3*(D-1)})")
    a("s_cmp_lg_u32 s70, 0")
    a("s_cbranch_scc1 L_A_seg2")
    for i in range(4): a(f"v_dot2c_f32_bf16 v{NA}, v{Q0+i}, v{SB[1]+i}")
    a("s_nop 2")
    for i in range(4): a(f"v_dot2c_f32_bf16 v{NB}, v{Q1+i}, v{SB[1]+4+i}")
    a(f"v_mov_b32 v{T0_}, v{NA}")
    a("s_nop 1")
    a(f"v_mov_b32 v{T1_}, v{NB}")
    a(f"v_permlane32_swap_b32 v{NA}, v{T0_}")
    a("s_nop 0")
    a(f"v_permlane32_swap_b32 v{NB}, v{T1_}")
    a("s_nop 1")
    a(f"v_add_f32 v{NA}, v{NA}, v{T0_}")
    a(f"v_add_f32 v{NB}, v{NB}, v{T1_}")
    a(f"v_max_f32 v{NA}, -v{NA}, -v{NB}")
    for r in range(16): a(f"v_mov_b32 v{CF+r}, v{NA}")
    if O_.prio: a("s_setprio 3")
    st()
    a(f"s_waitcnt vmcnt({3*(D-2)})")
    a("s_cmp_lg_u32 s56, 0")
    a("s_cbranch_scc1 L_A_wo")
    deferred_stores(a)
    a("s_branch L_A_go")
    a("L_A_wo:")
    if O_.wopf:
        a(f"v_lshlrev_b32 v{T0_}, 10, v1")
        a("s_and_b32 s59, s68, 1")
        a("s_lshl_b32 s59, s59, 18")
        a("s_lshl_b32 s60, s12, 7")
        a("s_add_u32 s59, s59, s60")
        a("s_and_b32 s60, s54, 3")
        a("s_lshl_b32 s60, s60, 16")
        a("s_add_u32 s59, s59, s60")
        a("s_cmp_lt_u32 s68, 2")
        a("s_cbranch_scc1 L_p2_woa")
        a(f"buffer_load_dword v249, v{T0_}, s[8:11], s59 offen")
        a("s_branch L_p2_nowo")
        a("L_p2_woa:")
        a(f"buffer_load_dword v249, v{T0_}, s[4:7], s59 offen")
        a("L_p2_nowo:")
    a("s_branch L_A_go")
    a("L_A_seg2:")
    a("s_waitcnt vmcnt(0)")
    lds_count(a, 32, 8, fo_off(a, FOB))
    if O_.prio: a("s_setprio 2")
    a("L_A_go:")
    a(f"v_mfma_f32_32x32x16_bf16 {vr(SB[0],16)}, {vr(KVB[0],4)}, {vr(Q0,4)}, {vr(CF,16)}")
    a("s_nop 11")
    a(".p2align 3")
    a("L_A_loop:")
    for n in range(D):
        cur = KVB[n]; prv = KVB[(n-1) % D]; nx = KVB[(n+1) % D]
        def ld(n=n, prv=prv):
            if (n + D - 1) % 2 == 0:
                a("s_add_u32 s66, s66, 4096")
                a("s_and_b32 s66, s66, 0x1ffff")
            kv_loads(a, prv, VK, VV, "s66", 2048 * ((n + D - 1) % 2))
        tstep(a, SB[0], SB[1], (OA[1], prv+8), (cur, Q1, CF), (OA[0], cur+4, False), after_pv1=ld)
        tstep(a, SB[1], SB[0], (OA[0], cur+8), (nx, Q0, CF), (OA[1], cur+4, False), before_qk=lambda: a(f"s_waitcnt vmcnt({3*(D-2)})"))
    a("s_sub_u32 s67, s67, 1")
    a("s_cmp_eq_u32 s67, s71")
    a("s_cbranch_scc1 L_A_hook")
    a("s_cmp_lg_u32 s67, 0")
    a("s_cbranch_scc1 L_A_loop")
    a(f"v_mfma_f32_32x32x16_bf16 {vr(OA[1],16)}, {vr(KVB[D-1]+8,4)}, {vr(P+4,4)}, {vr(OA[1],16)}")
    a("s_cmp_lg_u32 s70, 0")
    a("s_cbranch_scc1 L_A_done")
    a("s_lshl_b32 s60, s53, 8")
    a(f"s_add_u32 s60, s60, {FB}")
    poll_flags(a, 31, "s60")
    a(f"s_add_u32 s60, s65, {QF + 32*65536}")
    a(f"buffer_load_dwordx4 {vr(QB,4)}, v2, s[16:19], s60 offen {sc}")
    a(f"v_and_b32 v{T0_}, 31, v1")
    a(f"v_lshlrev_b32 v{T0_}, 2, v{T0_}")
    a("s_lshl_b32 s60, s58, 7")
    a("s_lshl_b32 s61, s53, 13")
    a("s_add_u32 s60, s60, s61")
    a(f"s_add_u32 s60, s60, {GO}")
    a(f"buffer_load_dword v{GA}, v{T0_}, s[16:19], s60 offen {sc}")
    def btile_off(i):
        a(f"s_add_i32 s66, s58, {i-8}")
        a("s_max_i32 s66, s66, 0")
        a("s_lshl_b32 s66, s66, 11")
    a("L_B_start:")
    vm = VM(a)
    def bload(n):
        btile_off(8 - n)
        kv_loads(a, KVB[n % 4], VKB, VVB, "s66", 0)
        vm.issue(("k", n)); vm.issue(("t", n)); vm.issue(("t", n))
    for n in range(3): bload(n)
    a("s_cmp_lg_u32 s28, 0")
    a("s_cbranch_scc1 L_B_again")
    lds_wait(a, 8, 4)
    a(f"v_mov_b32 v{NB}, 0")
    a("s_waitcnt vmcnt(8)")
    for i in range(4): a(f"v_dot2c_f32_bf16 v{NB}, v{QB+i}, v{KVB[0]+i}")
    a(f"v_sub_f32 v{GB_}, 1.0, v{GA}")
    a("s_nop 1")
    crossop(a, "v_add_f32", NB, T0_)
    a(f"v_sub_f32 v{NB}, 0, v{NB}")
    a("L_B_again:")
    a("s_cmp_ge_u32 s58, 8")
    a("s_cselect_b64 s[60:61], -1, 0")
    a(f"v_cndmask_b32 v{NBF}, v{NI}, v{NB}, s[60:61]")
    for r in range(16):
        i0 = 8*(r >> 2) + (r & 3)
        sp = 60 + 2*(r & 1)
        a(f"s_mov_b32 s{sp}, {hex((0xffffffff << i0) & 0xffffffff)}")
        a(f"s_mov_b32 s{sp+1}, {hex((0xffffffff << (i0+4)) & 0xffffffff)}")
        a(f"v_cndmask_b32 v{CD+r}, v{NI}, v{NB}, s[{sp}:{sp+1}]")
        a(f"v_cndmask_b32 v{CR+r}, v{NBF}, v{NI}, s[{sp}:{sp+1}]")
    for r in range(16): a(f"v_mov_b32 v{CFB+r}, v{NB}")
    vm.wait(("t", 0))
    a(f"v_mfma_f32_32x32x16_bf16 {vr(SB[0],16)}, {vr(KVB[0],4)}, {vr(QB,4)}, {vr(CD,16)}")
    a("s_nop 11")
    rare = []
    for n in range(9):
        i = 8 - n
        cur = KVB[n % 4]; prv = KVB[(n-1) % 4]; nx = KVB[(n+1) % 4]
        def ld(n=n):
            if n + 3 <= 8: bload(n + 3)
        def pre(n=n, i=i):
            if n + 1 <= 8: vm.wait(("t", n + 1))
            if i - 1 >= 1:
                lb = a.label("bmask")
                a(f"s_cmp_eq_u32 s58, {8-i}")
                a(f"s_cbranch_scc1 {lb}")
                a(f"{lb}_r:")
                rare.append(lb)
        def wo(n=n):
            if n < 8: wo_dma(a, n)
        tstep(a, SB[n & 1], SB[(n+1) & 1], (OB, prv+8) if n > 0 else None,
              (nx, QB, CFB if i - 1 >= 1 else CR) if i >= 1 else None, (OB, cur+4, n == 0), after_pv1=ld, before_qk=pre, after_pv0=wo)
    a("s_nop 1")
    a(f"v_mfma_f32_32x32x16_bf16 {vr(OB,16)}, {vr(KVB[0]+8,4)}, {vr(P+4,4)}, {vr(OB,16)}")
    a(f"s_add_u32 s66, s65, {OF + 32*65536}")
    a("s_nop 10")
    finalize(a, OB, GB_, "s28", "L_B_fb", "s66")
    a(f"s_add_u32 s66, s22, {O_.n1 * D * 2048}")
    a("s_and_b32 s66, s66, 0x1ffff")
    a(f"s_mov_b32 s67, {32 // D - O_.n1}")
    a("s_mov_b32 s70, 1")
    a(f"s_mov_b32 s71, {O_.pr1}")
    st()
    a("s_branch L_A_entry")
    for lb in rare:
        a(f"{lb}:")
        a("s_nop 7")
        for r in range(16): a(f"v_mov_b32 v{CFB+r}, v{NI}")
        a("s_nop 1")
        a(f"s_branch {lb}_r")
    a("L_A_hook:")
    a("s_cmp_lg_u32 s70, 0")
    a("s_cbranch_scc1 L_A_prio")
    a("s_waitcnt vmcnt(0)")
    lds_count(a, 8, 4, flagoff(a, FB))
    a("s_branch L_A_loop")
    if True:
        a("L_A_prio:")
        a(f"s_cmp_eq_u32 s71, {O_.pr0}")
        a("s_cbranch_scc1 L_A_prio0")
        a(f"s_mov_b32 s71, {O_.pr0}")
        if O_.prio: a("s_setprio 1")
        a("s_lshl_b32 s60, s15, 7")
        a(f"s_add_u32 s60, s60, {FOB}")
        poll_flags(a, 7, "s60")
        o_loads(a, 108, 1)
        a("s_branch L_A_loop")
        a("L_A_prio0:")
        if O_.prio: a("s_setprio 0")
        a("s_branch L_A_loop")
    a("L_A_done:")
    st()
    a("s_xor_b32 s60, s52, 4")
    a(f"s_mul_i32 s60, s60, {MBLK}")
    a(f"s_add_u32 s60, s60, {MERGE_LDS}")
    a(f"v_add_u32 v{VMG}, s60, v2")
    a(f"v_and_b32 v{MX}, 31, v1")
    a(f"v_lshlrev_b32 v{MX}, 2, v{MX}")
    a(f"v_add_u32 v{T1_}, s60, v{MX}")
    a("s_nop 3")
    a("s_cmp_lg_u32 s56, 0")
    a("s_cbranch_scc1 L_mg1")
    a(f"ds_write_b128 v{VMG}, {vr(OA[1],4)}")
    a(f"ds_write_b128 v{VMG}, {vr(OA[1]+4,4)} offset:1024")
    a(f"ds_write_b32 v{T1_}, v{OA[1]+8} offset:2048")
    a("s_branch L_mg2")
    a("L_mg1:")
    a(f"ds_write_b128 v{VMG}, {vr(OA[0],4)}")
    a(f"ds_write_b128 v{VMG}, {vr(OA[0]+4,4)} offset:1024")
    a(f"ds_write_b32 v{T1_}, v{OA[0]+8} offset:2048")
    a("s_waitcnt lgkmcnt(0)")
    for i in range(9): a(f"v_mov_b32 v{OA[0]+i}, v{OA[1]+i}")
    for i in range(4): a(f"v_mov_b32 v{Q0+i}, v{Q1+i}")
    a("L_mg2:")
    a(f"s_mul_i32 s60, s52, {MBLK}")
    a(f"s_add_u32 s60, s60, {MERGE_LDS}")
    a(f"v_add_u32 v{VMG}, s60, v2")
    a(f"v_add_u32 v{MX}, s60, v{MX}")
    a("s_waitcnt lgkmcnt(0)")
    a("s_barrier")
    a(f"ds_read_b128 {vr(SB[0],4)}, v{VMG}")
    a(f"ds_read_b128 {vr(SB[0]+4,4)}, v{VMG} offset:1024")
    a(f"ds_read_b32 v{SB[0]+8}, v{MX} offset:2048")
    a(f"s_add_u32 s66, s65, {OF}")
    a("s_waitcnt lgkmcnt(0)")
    for i in range(9): a(f"v_add_f32 v{OA[0]+i}, v{OA[0]+i}, v{SB[0]+i}")
    a("L_A_fin:")
    finalize(a, OA[0], GA, "s29", "L_A_fb", "s66")

def phase2_slow(a):
    K0 = KVB[0]
    def maxtile(Q, C, vk):
        a(f"buffer_load_dwordx4 {vr(K0,4)}, v{vk}, s[16:19], s67 offen {sc}")
        a("s_waitcnt vmcnt(0)")
        a(f"v_mfma_f32_32x32x16_bf16 {vr(SB[0],16)}, {vr(K0,4)}, {vr(Q,4)}, {C}")
        a("s_nop 15")
        for i in range(8): a(f"v_max3_f32 v{MX}, v{SB[0]+2*i}, v{SB[0]+2*i+1}, v{MX}")
    a("L_A_fb:")
    a("s_mov_b32 s29, 1")
    a(f"v_mov_b32 v{MX}, v{NI}")
    a("s_mov_b32 s67, 0")
    a("L_A_fb1:")
    maxtile(Q0, "0", VK)
    a("s_add_u32 s67, s67, 2048")
    a("s_cmp_lt_u32 s67, 131072")
    a("s_cbranch_scc1 L_A_fb1")
    crossop(a, "v_max_f32", MX, T0_)
    for r in range(16): a(f"v_sub_f32 v{CF+r}, 0, v{MX}")
    for r in range(16): a(f"v_mov_b32 v{OA[0]+r}, 0")
    a("s_mov_b32 s67, 0")
    a("L_A_fb2:")
    kv_loads(a, K0, VK, VV, "s67", 0)
    a("s_waitcnt vmcnt(0)")
    a(f"v_mfma_f32_32x32x16_bf16 {vr(SB[0],16)}, {vr(K0,4)}, {vr(Q0,4)}, {vr(CF,16)}")
    a("s_nop 15")
    for i in range(16): a(f"v_exp_f32 v{SB[0]+i}, v{SB[0]+i}")
    a("s_nop 0")
    for i in range(8): a(f"v_cvt_pk_bf16_f32 v{P+i}, v{SB[0]+2*i}, v{SB[0]+2*i+1}")
    a("s_nop 1")
    a(f"v_mfma_f32_32x32x16_bf16 {vr(OA[0],16)}, {vr(K0+4,4)}, {vr(P,4)}, {vr(OA[0],16)}")
    a(f"v_mfma_f32_32x32x16_bf16 {vr(OA[0],16)}, {vr(K0+8,4)}, {vr(P+4,4)}, {vr(OA[0],16)}")
    a("s_nop 15")
    a("s_add_u32 s67, s67, 2048")
    a("s_cmp_lt_u32 s67, 131072")
    a("s_cbranch_scc1 L_A_fb2")
    a("s_branch L_A_fin")
    a("L_B_fb:")
    a("s_mov_b32 s28, 1")
    a(f"v_mov_b32 v{MX}, v{NI}")
    for r in range(16): a(f"v_mov_b32 v{CFB+r}, v{NB}")
    a("s_lshl_b32 s67, s58, 11")
    maxtile(QB, vr(CD,16), VKB)
    a("s_add_i32 s67, s58, -8")
    a("s_max_i32 s67, s67, 0")
    a("s_lshl_b32 s67, s67, 11")
    maxtile(QB, vr(CR,16), VKB)
    a("s_min_u32 s60, s58, 7")
    a("s_lshl_b32 s67, s58, 11")
    a("L_B_fb1:")
    a("s_cmp_eq_u32 s60, 0")
    a("s_cbranch_scc1 L_B_fb2")
    a("s_sub_u32 s67, s67, 2048")
    maxtile(QB, vr(CFB,16), VKB)
    a("s_sub_u32 s60, s60, 1")
    a("s_branch L_B_fb1")
    a("L_B_fb2:")
    crossop(a, "v_max_f32", MX, T0_)
    a(f"v_sub_f32 v{NB}, v{NB}, v{MX}")
    a("s_branch L_B_start")

def phase3(a, st):
    OFB = 108; OFA = 20; AC = [200, 216]; WB = [152, 160]
    a("v_lshrrev_b32 v9, 5, v1")
    a("v_bfe_u32 v10, v1, 2, 2")
    a("v_lshl_add_u32 v11, v9, 2, v10")
    a("v_lshlrev_b32 v4, 7, v11")
    a("v_and_b32 v11, 1, v1")
    a("v_lshl_add_u32 v4, v11, 5, v4")
    a("v_bfe_u32 v11, v1, 4, 1")
    a("v_lshl_add_u32 v4, v11, 4, v4")
    a("v_bfe_u32 v11, v1, 1, 1")
    a("v_lshl_add_u32 v4, v11, 3, v4")
    a("s_lshl_b32 s60, s14, 14")
    a("v_add_u32 v4, s60, v4")
    a("v_bfe_u32 v11, v1, 3, 1")
    a("v_lshlrev_b32 v11, 6, v11")
    a("v_xor_b32 v12, 64, v11")
    a("v_add_u32 v5, v4, v12")
    a("v_add_u32 v4, v4, v11")
    a("v_add_u32 v13, 0x10000, v4")
    a("v_add_u32 v14, 0x10000, v5")
    a("s_lshl_b32 s61, s15, 7")
    srd(a, 24, 46, 2 << 20)
    a("s_lshl_b32 s64, s13, 15")
    a("s_lshl_b32 s65, s14, 11")
    a("s_add_u32 s65, s65, s64")
    a("v_add_u32 v6, s65, v2")
    a("s_lshl_b32 s65, s14, 13")
    a("s_add_u32 s65, s65, s64")
    a("v_add_u32 v7, s65, v2")
    a("v_and_b32 v8, 31, v1")
    a("v_lshlrev_b32 v8, 10, v8")
    a("v_lshl_add_u32 v8, v9, 5, v8")
    a("s_lshl_b32 s64, s23, 15")
    a("s_lshl_b32 s65, s12, 7")
    a("s_add_u32 s64, s64, s65")
    a("s_lshr_b32 s65, s14, 1")
    a("s_lshl_b32 s65, s65, 6")
    a("s_add_u32 s64, s64, s65")
    a("s_and_b32 s65, s14, 1")
    a("s_lshl_b32 s65, s65, 4")
    a("s_add_u32 s64, s64, s65")
    def reads(s):
        wb = WB[s & 1]; base = 4 if s < 8 else 13
        for ct in range(2):
            a(f"ds_read_b64_tr_b16 {vr(wb+4*ct,2)}, v{base+ct} offset:{(s&7)*2048}")
            a(f"ds_read_b64_tr_b16 {vr(wb+4*ct+2,2)}, v{base+ct} offset:{(s&7)*2048+1024}")
    reads(0)
    for s in range(16):
        if s == O_.pubo:
            a("s_waitcnt vmcnt(0)")
            st()
            lds_count(a, 12, 8, fo_off(a, FOA))
        if s == 8:
            a("s_barrier")
            a(f"s_add_u32 s60, s61, {FOA}")
            if O_.shp: poll_shared(a, 7, "s60", 40, 0)
            else: poll_flags(a, 7, "s60")
            st()
            o_loads(a, OFA, 0)
        if s + 1 < 16: reads(s + 1)
        if s < 8: a("s_waitcnt lgkmcnt(4)")
        else: a(f"s_waitcnt vmcnt({15 - s}) lgkmcnt({4 if s+1 < 16 else 0})")
        o = (OFB if s < 8 else OFA) + 4*(s & 7)
        for ct in range(2):
            a(f"v_mfma_f32_32x32x16_bf16 {vr(AC[ct],16)}, {vr(WB[s&1]+4*ct,4)}, {vr(o,4)}, {'0' if s == 0 else vr(AC[ct],16)}")
    a("s_nop 10")
    for owner in range(4):
        for q in range(2):
            a(f"ds_write_b128 v6, {vr(AC[owner>>1] + 8*(owner&1) + 4*q, 4)} offset:{owner*8192 + q*1024}")
    a("s_waitcnt lgkmcnt(0)")
    a("s_barrier")
    for src in range(4):
        for q in range(2):
            a(f"ds_read_b128 {vr(16 + src*8 + 4*q, 4)}, v7 offset:{src*2048 + q*1024}")
    a("s_waitcnt lgkmcnt(4)")
    for i in range(8): a(f"v_add_f32 v{16+i}, v{16+i}, v{24+i}")
    a("s_waitcnt lgkmcnt(0)")
    for i in range(8): a(f"v_add_f32 v{32+i}, v{32+i}, v{40+i}")
    for i in range(8): a(f"v_add_f32 v{16+i}, v{16+i}, v{32+i}")
    for i in range(4): a(f"v_cvt_pk_bf16_f32 v{48+i}, v{16+2*i}, v{17+2*i}")
    a("buffer_store_dwordx4 v[48:51], v8, s[24:27], s64 offen " + ["", "sc1", "nt", "sc0 sc1"][O_.outf])

def header():
    hdr = open("gated_mix__mha_block__sliding_block__prompt.s.ref").read().split("\n")
    hdr = [l for l in hdr if l.startswith(";") and "@launch" not in l and "Override" not in l and "grid=ceil" not in l]
    return "\n".join(hdr) + "\n"

def main(out):
    a = Asm(); st = Stamper(a)
    prologue(a, st)
    if O_.codepf:
        a("s_cmp_lg_u32 s52, 3")
        a("s_cbranch_scc1 L_nopf")
        code_prefetch(a)
        a("L_nopf:")
    a("s_cmp_lt_u32 s52, 4")
    a("s_cbranch_scc1 L_comp")
    n0 = st.n
    phase1_loader(a, st)
    st()
    n1 = st.n
    a("s_branch L_p2")
    a("L_comp:")
    st.n = n0
    phase1_comp(a, st)
    assert st.n == n1, (st.n, n1)
    phase2(a, st)
    phase3(a, st)
    if O_.stamps:
        a("s_waitcnt vmcnt(0)"); st(); st.flush()
    a("L_end:")
    a("s_endpgm")
    phase2_slow(a)
    a("L_code_end:")
    body = a.text()
    check_hazards(body)
    txt = header() + "; @launch grid=(256,1,1) block=(512,1,1) lds=163840\n"
    txt += '.amdgcn_target "amdgcn-amd-amdhsa--gfx950"\n.text\n' + body
    txt += '.section .rodata,"a"\n' + kd(NAME, 256, 102)
    open(out, "w").write(txt)

if __name__ == "__main__":
    for o in sys.argv[2:]:
        if o == "st": O_.stamps = True
        elif o == "fb": O_.force_fb = True
        elif "=" in o:
            k, v = o.split("="); setattr(O_, k, int(v))
    main(sys.argv[1])
```

```python
import sys, struct
from asmlib import *

QF = 0
GO = (16 << 20) + 0x10000
KV = 4 << 20
OF = 12 << 20
FL = 16 << 20
FA = FL
FB = FL + 0x1000
FOA = FL + 0x2000
FOB = FL + 0x3000
TS = 20 << 20
WS_BYTES = 24 << 20
LOG2E = 1.4426950408889634
NEGINF = 0xff800000
def f2u(x): return struct.unpack("<I", struct.pack("<f", x))[0]
NAME = "gated_mix__mha_block__sliding_block__prompt_kernel"

class Opt:
    stamps = False; force_fb = False; prio = True; codepf = True; pubz = 20; D = 4; wopf = True; n1 = 3; pr1 = 2; pr0 = 1; shp = 1; slp = 2; hold = 1; tlb = 0; pubo = 3; outf = 2; dbgt = 0; xtra = 0
O_ = Opt()
sc = "sc1"

GW_LDS = 153600
MERGE_LDS = 131072; MBLK = 2176
CTL = 163840 - 64
SPIN = 1 << 18

class Stamper:
    def __init__(self, a): self.a = a; self.n = 0; self.kid = 0
    def __call__(self):
        if not O_.stamps: return
        assert self.n < 13
        self.a(f"s_memtime s[{72+2*self.n}:{73+2*self.n}]")
        if self.n == 0: self.a("s_memrealtime s[98:99]")
        self.a("s_waitcnt lgkmcnt(0)")
        self.n += 1
    def flush(self):
        if not O_.stamps: return
        a = self.a
        a("s_memrealtime s[100:101]")
        a("s_lshl_b32 s62, s2, 3")
        a("s_add_u32 s62, s62, s52")
        a("s_lshl_b32 s62, s62, 6")
        a(f"s_add_u32 s62, s62, {TS}")
        a("v_mov_b32 v250, 0")
        a("s_waitcnt lgkmcnt(0)")
        for i, sg in enumerate([f"s{72+2*i}" for i in range(self.n)] + ["-1"]*(13-self.n) + [str(self.n), "s98", "s100"]):
            a(f"v_mov_b32 v252, {sg}")
            a(f"buffer_store_dword v252, v250, s[16:19], s62 offen offset:{4*i}")
        a("s_waitcnt vmcnt(0)")

class VM:
    def __init__(self, a): self.a = a; self.q = []; self.done = 0
    def issue(self, tag): self.q.append(tag)
    def wait(self, tag):
        last = max(i for i, t in enumerate(self.q) if t == tag)
        if last + 1 > self.done:
            self.done = last + 1
            n = len(self.q) - last - 1
            assert n < 64
            self.a(f"s_waitcnt vmcnt({n})")

def lds_count(a, cnt_off, target=None, flag_soff_code=None, inc=1):
    a(f"v_mov_b32 v250, {CTL}")
    a(f"v_mov_b32 v251, {inc}")
    a("s_mov_b64 exec, 1")
    if flag_soff_code is None:
        a(f"ds_add_u32 v250, v251 offset:{cnt_off}")
    else:
        lab = a.label("pub")
        a(f"ds_add_rtn_u32 v251, v250, v251 offset:{cnt_off}")
        a("v_mov_b32 v252, s30")
        a("v_mov_b32 v253, s31")
        a("s_waitcnt lgkmcnt(0)")
        a("v_readfirstlane_b32 s59, v251")
        a("v_mov_b32 v250, 0")
        a("s_and_b32 s59, s59, 0xff")
        a(f"s_cmp_lg_u32 s59, {target-1}")
        a(f"s_cbranch_scc1 {lab}")
        flag_soff_code()
        a("buffer_store_dwordx2 v[252:253], v250, s[16:19], s59 offen sc1")
        a(f"{lab}:")
    a("s_mov_b64 exec, -1")

def lds_wait(a, cnt_off, target, four=False):
    lab = a.label("lw")
    if four:
        a("v_and_b32 v250, 3, v1")
        a("v_lshlrev_b32 v250, 2, v250")
        a(f"v_add_u32 v250, {CTL}, v250")
    else:
        a(f"v_mov_b32 v250, {CTL}")
    a(f"s_mov_b32 s59, {SPIN*4}")
    a(f"{lab}:")
    a(f"ds_read_b32 v251, v250 offset:{cnt_off}")
    a("s_waitcnt lgkmcnt(0)")
    a(f"v_cmp_gt_u32 vcc, {target}, v251")
    a(f"s_cbranch_vccz {lab}_ok")
    a("s_sleep 1")
    a("s_sub_u32 s59, s59, 1")
    a("s_cmp_lg_u32 s59, 0")
    a(f"s_cbranch_scc1 {lab}")
    a(f"{lab}_ok:")

def poll_shared(a, mask, soff, word, wave):
    lab = a.label("ps")
    a(f"s_cmp_lg_u32 s52, {wave}")
    a(f"s_cbranch_scc1 {lab}_w")
    poll_flags(a, mask, soff)
    lds_count(a, word)
    a(f"s_branch {lab}_d")
    a(f"{lab}_w:")
    lds_wait(a, word, 1)
    a(f"{lab}_d:")

def poll_flags(a, mask, soff):
    lab = a.label("poll")
    a(f"v_and_b32 v250, {mask}, v1")
    a("v_lshlrev_b32 v250, 3, v250")
    a(f"s_mov_b32 s59, {SPIN}")
    a(f"{lab}:")
    a(f"buffer_load_dwordx2 v[252:253], v250, s[16:19], {soff} offen sc1")
    a("s_waitcnt vmcnt(0)")
    a("v_cmp_ne_u64 vcc, s[30:31], v[252:253]")
    a(f"s_cbranch_vccz {lab}_ok")
    a(f"s_sleep {O_.slp}")
    a("s_sub_u32 s59, s59, 1")
    a("s_cmp_lg_u32 s59, 0")
    a(f"s_cbranch_scc1 {lab}")
    a(f"{lab}_ok:")

def tag_issue(a):
    a("v_mov_b32 v249, 0")
    a("buffer_load_dwordx2 v[254:255], v249, s[20:23], 0 offen sc1")
def tag_finish(a):
    lab = a.label("tag")
    a(f"s_mov_b32 s59, {SPIN}")
    a(f"{lab}:")
    a("v_cmp_eq_u32 vcc, 0, v255")
    a(f"s_cbranch_vccz {lab}_ok")
    a("s_sleep 1")
    a("buffer_load_dwordx2 v[254:255], v249, s[20:23], 0 offen sc1")
    a("s_waitcnt vmcnt(0)")
    a("s_sub_u32 s59, s59, 1")
    a("s_cmp_lg_u32 s59, 0")
    a(f"s_cbranch_scc1 {lab}")
    a(f"{lab}_ok:")
    a("v_readfirstlane_b32 s30, v254")
    a("v_readfirstlane_b32 s31, v255")

def flagoff(a, base):
    def f():
        a("s_lshl_b32 s59, s55, 8")
        a("s_lshl_b32 s60, s3, 3")
        a("s_add_u32 s59, s59, s60")
        a(f"s_add_u32 s59, s59, {base}")
    return f

XS = 16; WR = 144; ACC = [176, 192, 208, 224]; GR = 240

def prologue(a, st):
    a(f".globl {NAME}\n.p2align 8\n.type {NAME},@function\n{NAME}:")
    a("s_cmp_ge_u32 s2, 256")
    a("s_cbranch_scc1 L_end")
    a("s_load_dwordx16 s[32:47], s[0:1], 0")
    a("s_load_dwordx4 s[48:51], s[0:1], 64")
    a("v_lshrrev_b32 v2, 6, v0")
    a("v_and_b32 v1, 63, v0")
    a("v_readfirstlane_b32 s52, v2")
    a("v_lshlrev_b32 v2, 4, v1")
    a("s_and_b32 s53, s2, 7")
    a("s_lshr_b32 s54, s2, 3")
    st()
    a("s_and_b32 s55, s53, 1")
    a("s_lshl_b32 s55, s55, 2")
    a("s_and_b32 s56, s54, 3")
    a("s_add_u32 s55, s55, s56")
    a("s_lshr_b32 s56, s53, 1")
    a("s_lshl_b32 s56, s56, 2")
    a("s_bfe_u32 s57, s54, 0x20002")
    a("s_add_u32 s56, s56, s57")
    a("s_lshr_b32 s57, s54, 4")
    a("s_lshl_b32 s3, s56, 1")
    a("s_add_u32 s3, s3, s57")
    a("s_lshl_b32 s58, s55, 1")
    a("s_add_u32 s58, s58, s3")
    a("s_and_b32 s58, s58, 7")
    a("s_and_b32 s68, s52, 3")

def phase1_loader(a, st):
    a("v_lshrrev_b32 v5, 3, v1")
    a("s_lshl_b32 s59, s68, 3")
    a("v_add_u32 v5, s59, v5")
    a("v_and_b32 v7, 7, v1")
    a("v_bfe_u32 v6, v5, 1, 3")
    a("v_xor_b32 v6, v6, v7")
    a("v_lshlrev_b32 v3, 10, v5")
    a("v_lshl_add_u32 v3, v6, 4, v3")
    a("s_lshl_b32 s59, s56, 17")
    a("v_add_u32 v3, s59, v3")
    a("v_mul_u32_u24 v4, 3072, v5")
    a("v_bfe_u32 v6, v1, 4, 1")
    a("v_lshlrev_b32 v6, 2, v6")
    a("v_xor_b32 v6, v6, v7")
    a("v_lshl_add_u32 v4, v6, 4, v4")
    a("s_lshl_b32 s59, s55, 7")
    a("v_add_u32 v4, s59, v4")
    a("s_lshl_b32 s59, s57, 10")
    a("s_add_u32 s59, s59, 1024")
    a("v_add_u32 v9, s59, v4")
    a("v_mov_b32 v248, 0")
    a("s_lshl_b32 s71, s68, 10")
    a("s_mov_b32 s60, s58")
    a("s_mov_b32 s63, 0")
    a("s_cmp_lg_u32 s57, 0")
    a("s_waitcnt lgkmcnt(0)")
    a("s_cselect_b32 s24, s40, s34")
    a("s_cselect_b32 s25, s41, s35")
    a(f"s_mov_b32 s26, {hex(512*1536*2)}")
    a("s_mov_b32 s27, 0x00020000")
    srd(a, 8, 34, 512*1536*2)
    srd(a, 4, 32, 2 << 20)
    a("L_ld_loop:")
    a("s_lshl_b32 s61, s60, 7")
    a(f"s_mul_i32 s62, s60, {64*3072}")
    for i in range(2):
        a(f"s_add_u32 m0, s71, {16384 + i*4096}")
        a(f"s_add_u32 s70, s62, {i*32*3072}")
        a("buffer_load_dwordx4 v9, s[8:11], s70 offen lds")
        a(f"s_add_u32 m0, s71, {24576 + i*4096}")
        a("s_nop 0")
        a("buffer_load_dwordx4 v4, s[24:27], s70 offen lds")
    for i in range(4):
        a(f"s_add_u32 m0, s71, {i*4096}")
        a(f"s_add_u32 s70, s61, {i*32768}")
        a("buffer_load_dwordx4 v3, s[4:7], s70 offen lds")
    a("s_add_u32 s60, s60, 1")
    a("s_and_b32 s60, s60, 7")
    a("s_add_u32 s71, s71, 32768")
    a("s_and_b32 s71, s71, 0x1ffff")
    a("s_add_u32 s63, s63, 1")
    a("s_cmp_eq_u32 s63, 1")
    a("s_cbranch_scc1 L_ld_loop")
    a("s_waitcnt vmcnt(8)")
    a("s_barrier")
    a("s_cmp_lt_u32 s63, 8")
    a("s_cbranch_scc1 L_ld_loop")
    srd(a, 12, 40, 512*1536*2)
    srd(a, 16, 50, WS_BYTES)
    srd(a, 20, 48, 256)
    def kvb(j):
        a(f"s_mul_i32 s62, s60, {64*3072}")
        for i in range(2):
            a(f"s_add_u32 m0, s71, {j*8192 + i*4096}")
            a(f"s_add_u32 s70, s62, {i*32*3072}")
            a("buffer_load_dwordx4 v9, s[12:15], s70 offen lds")
        a("s_add_u32 s60, s60, 1")
        a("s_and_b32 s60, s60, 7")
    for j in range(4): kvb(j)
    a("s_lshl_b32 s59, s68, 2")
    a(f"s_add_u32 s59, s59, {CTL + 16}")
    a("v_mov_b32 v10, s59")
    a("s_waitcnt vmcnt(8)")
    a("s_barrier")
    st()
    if O_.hold == 2:
        a("s_waitcnt vmcnt(0)")
        a("v_mov_b32 v11, 1")
        a("ds_write_b32 v10, v11")
    if O_.hold: lds_wait(a, 4 if O_.hold < 3 else 0, 4)
    for j in range(4, 8): kvb(j)
    a("s_waitcnt vmcnt(8)")
    tag_issue(a)
    a("v_mov_b32 v11, 1")
    a("ds_write_b32 v10, v11")
    st()
    a("s_waitcnt vmcnt(0)")
    a("v_mov_b32 v11, 2")
    a("ds_write_b32 v10, v11")
    st()
    tag_finish(a)

def code_prefetch(a):
    a("s_getpc_b64 s[28:29]")
    a("L_pcref:")
    a("s_lshl_b32 s59, s54, 10")
    a("v_lshlrev_b32 v10, 7, v1")
    a("v_add_u32 v10, s59, v10")
    a("v_cmp_gt_u32 vcc, L_code_end-L_pcref, v10")
    a("s_and_b64 vcc, vcc, 0xff")
    a("v_mov_b32 v11, s29")
    a("s_and_saveexec_b64 s[26:27], vcc")
    a("s_cbranch_execz L_pf_skip")
    a("v_add_co_u32 v10, vcc, s28, v10")
    a("s_nop 1")
    a("v_addc_co_u32 v11, vcc, 0, v11, vcc")
    a("global_load_dword v247, v[10:11], off")
    a("L_pf_skip:")
    a("s_mov_b64 exec, s[26:27]")

def comp_setup(a):
    a("s_waitcnt lgkmcnt(0)")
    srd(a, 20, 48, 256)
    a("s_cmp_lg_u32 s52, 0")
    a("s_cbranch_scc1 L_notw0")
    srd(a, 24, 44, 1024)
    a("s_lshl_b32 s59, s58, 7")
    a("v_add_u32 v5, s59, v2")
    a("v_and_b32 v5, 0x3ff, v5")
    a(f"s_mov_b32 m0, {GW_LDS}")
    a(f"v_mov_b32 v250, {CTL}")
    a("buffer_load_dwordx4 v5, s[24:27], 0 offen lds")
    for i in range(4): a(f"v_mov_b32 v{252+i}, 0")
    a("ds_write_b128 v250, v[252:255]")
    a("ds_write_b128 v250, v[252:255] offset:16")
    a("ds_write_b128 v250, v[252:255] offset:32")
    a("s_cmp_lg_u32 s2, 0")
    a("s_cbranch_scc1 L_notag")
    a("s_memrealtime s[28:29]")
    a("s_waitcnt lgkmcnt(0)")
    a("s_or_b32 s29, s29, 0x40000000")
    a("v_mov_b32 v254, s28")
    a("v_mov_b32 v255, s29")
    a("s_mov_b64 exec, 1")
    a("buffer_store_dwordx2 v[254:255], v252, s[20:23], 0 offen sc1")
    a("s_mov_b64 exec, -1")
    a("L_notag:")
    a("s_waitcnt vmcnt(0) lgkmcnt(0)")
    a("L_notw0:")
    if O_.tlb:
        a("s_cmp_lg_u32 s52, 2")
        a("s_cbranch_scc1 L_notlb")
        srd(a, 16, 50, WS_BYTES)
        a("v_mul_u32_u24 v10, 0x44000, v1")
        a("buffer_load_dword v247, v10, s[16:19], 0 offen sc1")
        srd(a, 24, 46, 2 << 20)
        a("v_lshlrev_b32 v10, 18, v1")
        a("buffer_load_dword v247, v10, s[24:27], 0 offen sc1")
        a("L_notlb:")
    a("v_and_b32 v10, 31, v1")
    a("s_lshl_b32 s59, s68, 12")
    a("v_lshlrev_b32 v11, 7, v10")
    a("v_add_u32 v11, s59, v11")
    a("v_bfe_u32 v12, v1, 1, 3")
    a("v_lshrrev_b32 v13, 5, v1")
    a("v_xor_b32 v12, v12, v13")
    a("v_lshl_add_u32 v5, v12, 4, v11")
    a("v_xor_b32 v6, 32, v5")
    a("v_xor_b32 v7, 64, v5")
    a("v_xor_b32 v8, 96, v5")
    a("v_bfe_u32 v10, v1, 2, 2")
    a("v_lshl_add_u32 v10, v13, 3, v10")
    a("v_lshlrev_b32 v9, 7, v10")
    a("v_bfe_u32 v10, v1, 3, 1")
    a("v_lshl_add_u32 v9, v10, 6, v9")
    a("v_bfe_u32 v10, v1, 4, 1")
    a("v_lshl_add_u32 v9, v10, 5, v9")
    a("v_lshlrev_b32 v3, 17, v10")
    a("v_and_b32 v10, 3, v1")
    a("v_lshl_add_u32 v9, v10, 3, v9")
    a("v_xor_b32 v4, 64, v9")
    a("s_lshl_b32 s69, s55, 8")
    a("s_lshl_b32 s59, s56, 2")
    a("s_add_u32 s59, s59, s68")
    a("s_add_u32 s59, s59, s69")
    a("s_lshl_b32 s70, s59, 11")
    a("v_lshl_add_u32 v3, v13, 8, v3")
    a("v_and_b32 v10, 15, v1")
    a("v_lshl_add_u32 v3, v10, 4, v3")
    a(f"s_mov_b32 s69, {hex(f2u(0.25*LOG2E))}")
    a("v_lshlrev_b32 v0, 4, v13")
    a(f"v_add_u32 v0, {GW_LDS}, v0")
    a("v_mov_b32 v14, 0")
    a("v_mov_b32 v15, 0")
    a("s_lshr_b32 s71, s70, 1")
    srd(a, 16, 50, WS_BYTES)

def pass_a(a, par, st):
    isv = par == 1; gate = False
    def reads(z):
        j = z // 4; s_ = z % 4
        if s_ == 0:
            a("s_barrier")
            if j == 7: st()
            if j and j % 2 == 0:
                for r in (4, 5, 6, 7, 8, 9): a(f"v_xor_b32 v{r}, 0x10000, v{r}")
        so = (j & 1) * 32768
        L = [f"ds_read_b128 {vr(XS + 4*z, 4)}, v{5 + s_} offset:{so}"]
        wr = WR + 16*(z % 2)
        for m in range(4):
            o = so + 16384 + (m >> 1)*8192 + s_*2048
            L.append(f"ds_read_b64_tr_b16 {vr(wr + 4*m, 2)}, v{4 if m & 1 else 9} offset:{o}")
            L.append(f"ds_read_b64_tr_b16 {vr(wr + 4*m + 2, 2)}, v{4 if m & 1 else 9} offset:{o + 512}")
        if gate: L.append(f"ds_read_b128 {vr(GR + 4*(z % 2), 4)}, v0 offset:{z*32}")
        return L
    for x in reads(0): a(x)
    for z in range(32):
        if z == 16: tag_issue(a)
        a("s_waitcnt lgkmcnt(0)")
        wr = WR + 16*(z % 2); x = vr(XS + 4*z, 4)
        R = None
        for m in range(4):
            w = vr(wr + 4*m, 4); v_ = isv and m < 2
            c = "0" if z == 0 else vr(ACC[m], 16)
            a(f"v_mfma_f32_32x32x16_bf16 {vr(ACC[m],16)}, {x if v_ else w}, {w if v_ else x}, {c}")
            if R is None: R = reads(z + 1) if z + 1 < 32 else []
            for y in R[:4]: a(y)
            R = R[4:]
            if gate and m >= 2:
                for i in (2*(m-2), 2*(m-2)+1): a(f"v_dot2c_f32_bf16 v{14 + (i & 1)}, v{XS+4*z+i}, v{GR+4*(z%2)+i}")
    a("v_xor_b32 v4, 0x10000, v4")
    a("v_xor_b32 v9, 0x10000, v9")

def pass_b(a, isv, waits, gate):
    GB4 = 208
    nr = 5 if gate else 4
    def reads(z):
        if z in waits: waits[z]()
        wr = WR + 8*(z % 4)
        L = []
        for ft in range(2):
            L.append(f"ds_read_b64_tr_b16 {vr(wr + 4*ft, 2)}, v{4 if ft else 9} offset:{z*2048}")
            L.append(f"ds_read_b64_tr_b16 {vr(wr + 4*ft + 2, 2)}, v{4 if ft else 9} offset:{z*2048 + 512}")
        if gate: L.append(f"ds_read_b128 {vr(GB4 + 4*(z % 4), 4)}, v0 offset:{z*32}")
        return L
    PF = 3
    for z in range(PF):
        for x in reads(z): a(x)
    for z in range(32):
        R = reads(z + PF) if z + PF < 32 else []
        a(f"s_waitcnt lgkmcnt({nr * (min(z + PF, 32) - z - 1)})")
        wr = WR + 8*(z % 4); x = vr(XS + 4*z, 4)
        for ft in range(2):
            w = vr(wr + 4*ft, 4)
            c = "0" if z == 0 else vr(ACC[ft], 16)
            a(f"v_mfma_f32_32x32x16_bf16 {vr(ACC[ft],16)}, {x if isv else w}, {w if isv else x}, {c}")
            if gate:
                for i in (2*ft, 2*ft+1): a(f"v_dot2c_f32_bf16 v{14 + (i & 1)}, v{XS+4*z+i}, v{GB4+4*(z%4)+i}")
            for y in (R[:2] if ft == 0 else R[2:]): a(y)

def kv_epilogue(a, isv, acc, b):
    for ft in range(2):
        c = acc[ft]
        for i in range(8): a(f"v_cvt_pk_bf16_f32 v{c+i}, v{c+2*i}, v{c+2*i+1}")
        if not isv:
            for e in range(2):
                a(f"s_add_u32 s59, s70, {KV + (b*32 + 2*ft + e)*131072}")
                a(f"buffer_store_dwordx4 {vr(c+4*e,4)}, v2, s[16:19], s59 offen {sc}")
        else:
            a(f"s_add_u32 s59, s70, {KV + (b*32 + 2*ft)*131072}")
            a(f"buffer_store_dwordx4 {vr(c,4)}, v3, s[16:19], s59 offen offset:1024 {sc}")
            a(f"buffer_store_dwordx4 {vr(c+4,4)}, v3, s[16:19], s59 offen offset:1536 {sc}")

def q_epilogue(a, b):
    for ft in range(2):
        c = ACC[2 + ft]
        for i in range(16): a(f"v_mul_f32 v{c+i}, s69, v{c+i}")
        for i in range(8): a(f"v_cvt_pk_bf16_f32 v{c+i}, v{c+2*i}, v{c+2*i+1}")
        for e in range(2):
            a(f"s_add_u32 s59, s71, {QF + (b*32 + 2*ft + e)*65536}")
            a(f"buffer_store_dwordx4 {vr(c+4*e,4)}, v2, s[16:19], s59 offen {sc}")

DKV = 232
DQ = [208, 224]
DADR = 248
def phase1_comp(a, st):
    comp_setup(a)
    n0 = st.n
    lw = lambda lvl: (lambda: lds_wait(a, 16, lvl, four=True))
    a("s_cmp_lg_u32 s57, 0")
    a("s_cbranch_scc1 L_p1_v")
    for par in (0, 1):
        if par: a("L_p1_v:"); st.n = n0
        pass_a(a, par, st)
        a("s_nop 7")
        kv_epilogue(a, par == 1, ACC[:2], 0)
        if par == 0: q_epilogue(a, 0)
        lds_count(a, 4)
        st()
        if par == 1:
            for ft in range(2):
                c = ACC[2 + ft]
                for i in range(16): a(f"v_mul_f32 v{c+i}, s69, v{c+i}")
                for i in range(8): a(f"v_cvt_pk_bf16_f32 v{c+i}, v{c+2*i}, v{c+2*i+1}")
        else:
            a("v_mov_b32 v10, 0")
            a("v_mov_b32 v11, 0")
            def gr(bt):
                for i in range(4): a(f"ds_read_b128 {vr(WR + 16*(bt & 1) + 4*i, 4)}, v0 offset:{(4*bt + i)*32}")
            gr(0)
            for bt in range(8):
                if bt < 7: gr(bt + 1)
                a(f"s_waitcnt lgkmcnt({4 if bt < 7 else 0})")
                for i in range(16): a(f"v_dot2c_f32_bf16 v{(14, 15, 10, 11)[i & 3]}, v{XS + 16*bt + i}, v{WR + 16*(bt & 1) + i}")
        a("s_waitcnt vmcnt(0)")
        st()
        tag_finish(a)
        lds_count(a, 0, 4, flagoff(a, FA))
        if O_.prio: a("s_setprio 3")
        pass_b(a, par == 1, {0: lw(1), 16: lw(2)}, False)
        if par == 0:
            a(f"v_and_b32 v{DADR}, 31, v1")
            a(f"v_lshlrev_b32 v{DADR}, 2, v{DADR}")
            a("v_add_f32 v10, v10, v11")
            a("v_add_f32 v14, v14, v15")
            a("v_add_f32 v14, v14, v10")
            crossop(a, "v_add_f32", 14, 15)
            a(f"v_mul_f32 v14, {hex(f2u(-LOG2E))}, v14")
            a("v_exp_f32 v14, v14")
            a("s_nop 0")
            a("v_add_f32 v14, 1.0, v14")
            a(f"v_rcp_f32 v{DQ[0]}, v14")
        else:
            a(f"v_mov_b32 v{DADR}, v3")
            a("s_nop 10")
        for ft in range(2):
            for i in range(8): a(f"v_cvt_pk_bf16_f32 v{DKV+8*ft+i}, v{ACC[ft]+2*i}, v{ACC[ft]+2*i+1}")
        if par == 0: a("s_branch L_p1_end")
    a("L_p1_end:")
    a("s_mov_b32 s0, s70")
    a("s_mov_b32 s1, s57")
    a("s_lshl_b32 s59, s56, 2")
    a("s_add_u32 s59, s59, s68")
    a("s_lshl_b32 s59, s59, 7")
    a("s_lshl_b32 s60, s55, 13")
    a("s_add_u32 s33, s59, s60")
    st()

def deferred_stores(a):
    a("s_cmp_lg_u32 s1, 0")
    a("s_cbranch_scc1 L_def_v")
    for i in range(4):
        a(f"s_add_u32 s59, s0, {KV + (32 + i)*131072}")
        a(f"buffer_store_dwordx4 {vr(DKV+4*i,4)}, v2, s[16:19], s59 offen {sc}")
    a(f"s_add_u32 s59, s33, {GO}")
    a(f"buffer_store_dword v{DQ[0]}, v{DADR}, s[16:19], s59 offen {sc}")
    a("s_branch L_def_done")
    a("L_def_v:")
    for ft in range(2):
        a(f"s_add_u32 s59, s0, {KV + (32 + 2*ft)*131072}")
        a(f"buffer_store_dwordx4 {vr(DKV+8*ft,4)}, v{DADR}, s[16:19], s59 offen offset:1024 {sc}")
        a(f"buffer_store_dwordx4 {vr(DKV+8*ft+4,4)}, v{DADR}, s[16:19], s59 offen offset:1536 {sc}")
    a("s_lshr_b32 s60, s0, 1")
    for i in range(4):
        a(f"s_add_u32 s59, s60, {QF + (32 + i)*65536}")
        a(f"buffer_store_dwordx4 {vr(DQ[i>>1]+4*(i&1),4)}, v2, s[16:19], s59 offen {sc}")
    a("L_def_done:")

Q0 = 8; Q1 = 12; QB = 16
SB = [20, 36]; P = 52; OA = [60, 76]; CF = 92; CD = 108; CR = 124
NA = 140; NB = 141; GA = 142; GB_ = 143; VK = 144; VV = 145; NI = 146; NBF = 147; MX = 148; VKB = 149; VVB = 150; T0_ = 151; T1_ = 5; VMG = 6; VWO = 7
KVB = [152 + 12*i for i in range(4)]; OB = 200; CFB = 216

def kv_loads(a, buf, vk, vv, soff, off):
    a(f"buffer_load_dwordx4 {vr(buf,4)}, v{vk}, s[16:19], {soff} offen offset:{off} {sc}")
    a("s_mov_b64 exec, s[24:25]")
    a(f"buffer_load_dwordx4 {vr(buf+4,4)}, v{vv}, s[16:19], {soff} offen offset:{off+1024} {sc}")
    a(f"buffer_load_dwordx4 {vr(buf+8,4)}, v{vv}, s[16:19], {soff} offen offset:{off+1536} {sc}")
    a("s_mov_b64 exec, -1")

def tstep(a, S, Sn, pv1, qk, pv0, after_pv1=None, before_qk=None, after_pv0=None):
    def E(i): a(f"v_exp_f32 v{S+i}, v{S+i}")
    def C(i): a(f"v_cvt_pk_bf16_f32 v{P+i}, v{S+2*i}, v{S+2*i+1}")
    E(0); E(1)
    if pv1: a(f"v_mfma_f32_32x32x16_bf16 {vr(pv1[0],16)}, {vr(pv1[1],4)}, {vr(P+4,4)}, {vr(pv1[0],16)}")
    if after_pv1: after_pv1()
    E(2); E(3); C(0); E(4); E(5); C(1)
    if before_qk: before_qk()
    if qk: a(f"v_mfma_f32_32x32x16_bf16 {vr(Sn,16)}, {vr(qk[0],4)}, {vr(qk[1],4)}, {vr(qk[2],16)}")
    E(6); E(7); C(2); E(8); E(9); C(3); E(10); E(11)
    a(f"v_mfma_f32_32x32x16_bf16 {vr(pv0[0],16)}, {vr(pv0[1],4)}, {vr(P,4)}, {'0' if pv0[2] else vr(pv0[0],16)}")
    if after_pv0: after_pv0()
    C(4); E(12); E(13); C(5); E(14); E(15); C(6); C(7)

def finalize(a, O, gate, flag_sgpr, fb_label, sofs):
    a(f"v_rcp_f32 v{T0_}, v{O+8}")
    a(f"v_cmp_gt_f32 s[60:61], s26, v{O+8}")
    a(f"v_mul_f32 v{T0_}, v{gate}, v{T0_}")
    for i in range(8): a(f"v_mul_f32 v{O+i}, v{T0_}, v{O+i}")
    a(f"v_add_f32 v{T1_}, |v{O}|, |v{O+1}|")
    for i in range(2, 8): a(f"v_add_f32 v{T1_}, v{T1_}, |v{O+i}|")
    a(f"v_cmp_gt_f32 s[62:63], s27, v{T1_}")
    for i in range(4): a(f"v_cvt_pk_bf16_f32 v{O+12+i}, v{O+2*i}, v{O+2*i+1}")
    a("s_and_b64 s[60:61], s[60:61], s[62:63]")
    a("s_cmp_eq_u64 s[60:61], -1")
    a(f"s_cselect_b32 s60, 1, {flag_sgpr}")
    a("s_cmp_eq_u32 s60, 0")
    a(f"s_cbranch_scc1 {fb_label}")
    a(f"buffer_store_dwordx4 {vr(O+12,4)}, v2, s[16:19], {sofs} offen {sc}")

def crossop(a, op, reg, tmp):
    a(f"v_mov_b32 v{tmp}, v{reg}")
    a("s_nop 1")
    a(f"v_permlane32_swap_b32 v{reg}, v{tmp}")
    a("s_nop 1")
    a(f"{op} v{reg}, v{reg}, v{tmp}")

def p3_roles(a):
    a("s_lshl_b32 s15, s53, 2")
    a("s_and_b32 s59, s54, 3")
    a("s_add_u32 s15, s15, s59")
    a("s_lshr_b32 s12, s54, 2")
    a("s_and_b32 s13, s52, 1")
    a("s_lshr_b32 s14, s52, 1")
    a("s_lshl_b32 s23, s15, 1")
    a("s_add_u32 s23, s23, s13")
    srd(a, 4, 36, 512*512*2)
    srd(a, 8, 42, 512*512*2)
    a("s_lshl_b32 s20, s14, 17")
    a("s_lshl_b32 s59, s13, 13")
    a("s_add_u32 s20, s20, s59")
    a("s_lshl_b32 s59, s12, 7")
    a("s_add_u32 s20, s20, s59")
    a("s_lshl_b32 s21, s14, 14")
    a("s_lshl_b32 s59, s13, 10")
    a("s_add_u32 s21, s21, s59")
    a(f"v_lshrrev_b32 v{T0_}, 3, v1")
    a(f"v_lshlrev_b32 v{VWO}, 10, v{T0_}")
    a(f"v_bfe_u32 v{T0_}, v1, 4, 1")
    a(f"v_lshlrev_b32 v{T0_}, 2, v{T0_}")
    a(f"v_and_b32 v{T1_}, 7, v1")
    a(f"v_xor_b32 v{T0_}, v{T0_}, v{T1_}")
    a(f"v_lshl_add_u32 v{VWO}, v{T0_}, 4, v{VWO}")

def wo_dma(a, i):
    a(f"s_add_u32 s59, s12, {i}")
    a("s_and_b32 s59, s59, 7")
    a("s_lshl_b32 s59, s59, 14")
    a(f"s_add_u32 m0, s21, {i*2048}")
    a("s_add_u32 s59, s59, s20")
    a(f"buffer_load_dwordx4 v{VWO}, s[8:11], s59 offen lds")
    a(f"s_add_u32 m0, s21, {65536 + i*2048}")
    a("s_nop 0")
    a(f"buffer_load_dwordx4 v{VWO}, s[4:7], s59 offen lds")

def o_loads(a, dst, b):
    a("s_lshl_b32 s63, s14, 19")
    a("s_lshl_b32 s59, s23, 10")
    a("s_add_u32 s63, s63, s59")
    a(f"s_add_u32 s63, s63, {OF + b*32*65536}")
    for i in range(8):
        a(f"s_add_u32 s59, s12, {i}")
        a("s_and_b32 s59, s59, 7")
        a("s_lshl_b32 s59, s59, 16")
        a("s_add_u32 s59, s59, s63")
        a(f"buffer_load_dwordx4 {vr(dst+4*i,4)}, v2, s[16:19], s59 offen {sc}")

def fo_off(a, base):
    def f():
        a("s_lshl_b32 s59, s54, 7")
        a("s_lshl_b32 s60, s53, 3")
        a("s_add_u32 s59, s59, s60")
        a(f"s_add_u32 s59, s59, {base}")
    return f

def phase2(a, st):
    D = O_.D
    a("L_p2:")
    a("s_lshl_b32 s56, s53, 2")
    a("s_add_u32 s69, s68, s56")
    a("s_lshr_b32 s56, s52, 2")
    a("s_lshl_b32 s57, s54, 1")
    a("s_add_u32 s58, s57, s56")
    a("s_lshl_b32 s59, s69, 6")
    a("s_add_u32 s65, s59, s58")
    a("s_lshl_b32 s65, s65, 10")
    a("s_add_u32 s64, s59, s57")
    a("s_lshl_b32 s64, s64, 10")
    a("s_mov_b32 s24, 0x0000ffff")
    a("s_mov_b32 s25, 0x0000ffff")
    p3_roles(a)
    a("s_mov_b32 s60, 0x00110000")
    a("s_mov_b32 s61, 0x00110000")
    a(f"v_mov_b32 v{T0_}, 0x3f803f80")
    a(f"v_cndmask_b32 v{T0_}, 0, v{T0_}, s[60:61]")
    for b in KVB[:D]:
        for i in range(8): a(f"v_mov_b32 v{b+4+i}, v{T0_}")
    a("s_lshl_b32 s60, s69, 17")
    a(f"s_add_u32 s60, s60, {KV}")
    a(f"v_add_u32 v{VK}, s60, v2")
    a(f"v_lshrrev_b32 v{T0_}, 5, v1")
    a(f"v_lshlrev_b32 v{T0_}, 8, v{T0_}")
    a(f"v_and_b32 v{T1_}, 15, v1")
    a(f"v_lshl_add_u32 v3, v{T1_}, 4, v{T0_}")
    a(f"v_add_u32 v{VV}, s60, v3")
    a(f"s_add_u32 s60, s60, {32*131072}")
    a(f"v_add_u32 v{VKB}, s60, v2")
    a(f"v_add_u32 v{VVB}, s60, v3")
    a(f"s_mov_b32 s26, {hex(f2u(2.0**64) if not O_.force_fb else f2u(0.5))}")
    a("s_mov_b32 s27, 0x7f800000")
    a("s_mov_b32 s28, 0")
    a("s_mov_b32 s29, 0")
    a(f"v_mov_b32 v{NI}, {hex(NEGINF)}")
    for r in range(16): a(f"v_mov_b32 v{OA[0]+r}, 0")
    for r in range(16): a(f"v_mov_b32 v{OA[1]+r}, 0")
    a(f"v_mov_b32 v{NA}, 0")
    a(f"v_mov_b32 v{NB}, 0")
    a("s_lshl_b32 s22, s54, 12")
    a("s_lshl_b32 s60, s56, 16")
    a("s_add_u32 s22, s22, s60")
    a("s_and_b32 s66, s22, 0x1ffff")
    a(f"s_mov_b32 s67, {O_.n1}")
    a("s_mov_b32 s70, 0")
    a("s_cmp_lg_u32 s56, 0")
    a(f"s_cselect_b32 s71, -1, {O_.n1 - 1}")
    a("s_lshl_b32 s60, s53, 8")
    a(f"s_add_u32 s60, s60, {FA}")
    st()
    if O_.shp: poll_shared(a, 31, "s60", 36, 4)
    else: poll_flags(a, 31, "s60")
    st()
    a(f"buffer_load_dwordx4 {vr(Q0,4)}, v2, s[16:19], s64 offen {sc}")
    a(f"buffer_load_dwordx4 {vr(Q1,4)}, v2, s[16:19], s64 offen offset:1024 {sc}")
    a("s_lshl_b32 s60, s57, 11")
    a(f"buffer_load_dwordx4 {vr(SB[1],4)}, v{VK}, s[16:19], s60 offen {sc}")
    a(f"buffer_load_dwordx4 {vr(SB[1]+4,4)}, v{VK}, s[16:19], s60 offen offset:2048 {sc}")
    a("L_A_entry:")
    for n in range(D - 1):
        if n and n % 2 == 0:
            a("s_add_u32 s66, s66, 4096")
            a("s_and_b32 s66, s66, 0x1ffff")
        kv_loads(a, KVB[n], VK, VV, "s66", 2048 * (n % 2))
    for r in range(4): a(f"v_mov_b32 v{P+4+r}, 0")
    a(f"s_waitcnt vmcnt({3*(D-1)})")
    a("s_cmp_lg_u32 s70, 0")
    a("s_cbranch_scc1 L_A_seg2")
    for i in range(4): a(f"v_dot2c_f32_bf16 v{NA}, v{Q0+i}, v{SB[1]+i}")
    a("s_nop 2")
    for i in range(4): a(f"v_dot2c_f32_bf16 v{NB}, v{Q1+i}, v{SB[1]+4+i}")
    a(f"v_mov_b32 v{T0_}, v{NA}")
    a("s_nop 1")
    a(f"v_mov_b32 v{T1_}, v{NB}")
    a(f"v_permlane32_swap_b32 v{NA}, v{T0_}")
    a("s_nop 0")
    a(f"v_permlane32_swap_b32 v{NB}, v{T1_}")
    a("s_nop 1")
    a(f"v_add_f32 v{NA}, v{NA}, v{T0_}")
    a(f"v_add_f32 v{NB}, v{NB}, v{T1_}")
    a(f"v_max_f32 v{NA}, -v{NA}, -v{NB}")
    for r in range(16): a(f"v_mov_b32 v{CF+r}, v{NA}")
    if O_.prio: a("s_setprio 3")
    st()
    a(f"s_waitcnt vmcnt({3*(D-2)})")
    a("s_cmp_lg_u32 s56, 0")
    a("s_cbranch_scc1 L_A_wo")
    deferred_stores(a)
    a("s_branch L_A_go")
    a("L_A_wo:")
    if O_.wopf:
        a(f"v_lshlrev_b32 v{T0_}, 10, v1")
        a("s_and_b32 s59, s68, 1")
        a("s_lshl_b32 s59, s59, 18")
        a("s_lshl_b32 s60, s12, 7")
        a("s_add_u32 s59, s59, s60")
        a("s_and_b32 s60, s54, 3")
        a("s_lshl_b32 s60, s60, 16")
        a("s_add_u32 s59, s59, s60")
        a("s_cmp_lt_u32 s68, 2")
        a("s_cbranch_scc1 L_p2_woa")
        a(f"buffer_load_dword v249, v{T0_}, s[8:11], s59 offen")
        a("s_branch L_p2_nowo")
        a("L_p2_woa:")
        a(f"buffer_load_dword v249, v{T0_}, s[4:7], s59 offen")
        a("L_p2_nowo:")
    a("s_branch L_A_go")
    a("L_A_seg2:")
    a("s_waitcnt vmcnt(0)")
    lds_count(a, 32, 8, fo_off(a, FOB))
    if O_.prio: a("s_setprio 2")
    a("L_A_go:")
    a(f"v_mfma_f32_32x32x16_bf16 {vr(SB[0],16)}, {vr(KVB[0],4)}, {vr(Q0,4)}, {vr(CF,16)}")
    a("s_nop 11")
    a(".p2align 3")
    a("L_A_loop:")
    for n in range(D):
        cur = KVB[n]; prv = KVB[(n-1) % D]; nx = KVB[(n+1) % D]
        def ld(n=n, prv=prv):
            if (n + D - 1) % 2 == 0:
                a("s_add_u32 s66, s66, 4096")
                a("s_and_b32 s66, s66, 0x1ffff")
            kv_loads(a, prv, VK, VV, "s66", 2048 * ((n + D - 1) % 2))
        tstep(a, SB[0], SB[1], (OA[1], prv+8), (cur, Q1, CF), (OA[0], cur+4, False), after_pv1=ld)
        tstep(a, SB[1], SB[0], (OA[0], cur+8), (nx, Q0, CF), (OA[1], cur+4, False), before_qk=lambda: a(f"s_waitcnt vmcnt({3*(D-2)})"))
    a("s_sub_u32 s67, s67, 1")
    a("s_cmp_eq_u32 s67, s71")
    a("s_cbranch_scc1 L_A_hook")
    a("s_cmp_lg_u32 s67, 0")
    a("s_cbranch_scc1 L_A_loop")
    a(f"v_mfma_f32_32x32x16_bf16 {vr(OA[1],16)}, {vr(KVB[D-1]+8,4)}, {vr(P+4,4)}, {vr(OA[1],16)}")
    a("s_cmp_lg_u32 s70, 0")
    a("s_cbranch_scc1 L_A_done")
    a("s_lshl_b32 s60, s53, 8")
    a(f"s_add_u32 s60, s60, {FB}")
    poll_flags(a, 31, "s60")
    a(f"s_add_u32 s60, s65, {QF + 32*65536}")
    a(f"buffer_load_dwordx4 {vr(QB,4)}, v2, s[16:19], s60 offen {sc}")
    a(f"v_and_b32 v{T0_}, 31, v1")
    a(f"v_lshlrev_b32 v{T0_}, 2, v{T0_}")
    a("s_lshl_b32 s60, s58, 7")
    a("s_lshl_b32 s61, s53, 13")
    a("s_add_u32 s60, s60, s61")
    a(f"s_add_u32 s60, s60, {GO}")
    a(f"buffer_load_dword v{GA}, v{T0_}, s[16:19], s60 offen {sc}")
    def btile_off(i):
        a(f"s_add_i32 s66, s58, {i-8}")
        a("s_max_i32 s66, s66, 0")
        a("s_lshl_b32 s66, s66, 11")
    a("L_B_start:")
    vm = VM(a)
    def bload(n):
        btile_off(8 - n)
        kv_loads(a, KVB[n % 4], VKB, VVB, "s66", 0)
        vm.issue(("k", n)); vm.issue(("t", n)); vm.issue(("t", n))
    for n in range(3): bload(n)
    a("s_cmp_lg_u32 s28, 0")
    a("s_cbranch_scc1 L_B_again")
    lds_wait(a, 8, 4)
    a(f"v_mov_b32 v{NB}, 0")
    a("s_waitcnt vmcnt(8)")
    for i in range(4): a(f"v_dot2c_f32_bf16 v{NB}, v{QB+i}, v{KVB[0]+i}")
    a(f"v_sub_f32 v{GB_}, 1.0, v{GA}")
    a("s_nop 1")
    crossop(a, "v_add_f32", NB, T0_)
    a(f"v_sub_f32 v{NB}, 0, v{NB}")
    a("L_B_again:")
    a("s_cmp_ge_u32 s58, 8")
    a("s_cselect_b64 s[60:61], -1, 0")
    a(f"v_cndmask_b32 v{NBF}, v{NI}, v{NB}, s[60:61]")
    for r in range(16):
        i0 = 8*(r >> 2) + (r & 3)
        sp = 60 + 2*(r & 1)
        a(f"s_mov_b32 s{sp}, {hex((0xffffffff << i0) & 0xffffffff)}")
        a(f"s_mov_b32 s{sp+1}, {hex((0xffffffff << (i0+4)) & 0xffffffff)}")
        a(f"v_cndmask_b32 v{CD+r}, v{NI}, v{NB}, s[{sp}:{sp+1}]")
        a(f"v_cndmask_b32 v{CR+r}, v{NBF}, v{NI}, s[{sp}:{sp+1}]")
    for r in range(16): a(f"v_mov_b32 v{CFB+r}, v{NB}")
    vm.wait(("t", 0))
    a(f"v_mfma_f32_32x32x16_bf16 {vr(SB[0],16)}, {vr(KVB[0],4)}, {vr(QB,4)}, {vr(CD,16)}")
    a("s_nop 11")
    rare = []
    for n in range(9):
        i = 8 - n
        cur = KVB[n % 4]; prv = KVB[(n-1) % 4]; nx = KVB[(n+1) % 4]
        def ld(n=n):
            if n + 3 <= 8: bload(n + 3)
        def pre(n=n, i=i):
            if n + 1 <= 8: vm.wait(("t", n + 1))
            if i - 1 >= 1:
                lb = a.label("bmask")
                a(f"s_cmp_eq_u32 s58, {8-i}")
                a(f"s_cbranch_scc1 {lb}")
                a(f"{lb}_r:")
                rare.append(lb)
        def wo(n=n):
            if n < 8: wo_dma(a, n)
        tstep(a, SB[n & 1], SB[(n+1) & 1], (OB, prv+8) if n > 0 else None,
              (nx, QB, CFB if i - 1 >= 1 else CR) if i >= 1 else None, (OB, cur+4, n == 0), after_pv1=ld, before_qk=pre, after_pv0=wo)
    a("s_nop 1")
    a(f"v_mfma_f32_32x32x16_bf16 {vr(OB,16)}, {vr(KVB[0]+8,4)}, {vr(P+4,4)}, {vr(OB,16)}")
    a(f"s_add_u32 s66, s65, {OF + 32*65536}")
    a("s_nop 10")
    finalize(a, OB, GB_, "s28", "L_B_fb", "s66")
    a(f"s_add_u32 s66, s22, {O_.n1 * D * 2048}")
    a("s_and_b32 s66, s66, 0x1ffff")
    a(f"s_mov_b32 s67, {32 // D - O_.n1 + O_.xtra}")
    a("s_mov_b32 s70, 1")
    a(f"s_mov_b32 s71, {O_.pr1}")
    st()
    a("s_branch L_A_entry")
    for lb in rare:
        a(f"{lb}:")
        a("s_nop 7")
        for r in range(16): a(f"v_mov_b32 v{CFB+r}, v{NI}")
        a("s_nop 1")
        a(f"s_branch {lb}_r")
    a("L_A_hook:")
    a("s_cmp_lg_u32 s70, 0")
    a("s_cbranch_scc1 L_A_prio")
    a("s_waitcnt vmcnt(0)")
    lds_count(a, 8, 4, flagoff(a, FB))
    a("s_branch L_A_loop")
    if True:
        a("L_A_prio:")
        a(f"s_cmp_eq_u32 s71, {O_.pr0}")
        a("s_cbranch_scc1 L_A_prio0")
        a(f"s_mov_b32 s71, {O_.pr0}")
        if O_.prio: a("s_setprio 1")
        a("s_lshl_b32 s60, s15, 7")
        a(f"s_add_u32 s60, s60, {FOB}")
        poll_flags(a, 7, "s60")
        o_loads(a, 108, 1)
        a("s_branch L_A_loop")
        a("L_A_prio0:")
        if O_.prio: a("s_setprio 0")
        a("s_branch L_A_loop")
    a("L_A_done:")
    st()
    a("s_xor_b32 s60, s52, 4")
    a(f"s_mul_i32 s60, s60, {MBLK}")
    a(f"s_add_u32 s60, s60, {MERGE_LDS}")
    a(f"v_add_u32 v{VMG}, s60, v2")
    a(f"v_and_b32 v{MX}, 31, v1")
    a(f"v_lshlrev_b32 v{MX}, 2, v{MX}")
    a(f"v_add_u32 v{T1_}, s60, v{MX}")
    a("s_nop 3")
    a("s_cmp_lg_u32 s56, 0")
    a("s_cbranch_scc1 L_mg1")
    a(f"ds_write_b128 v{VMG}, {vr(OA[1],4)}")
    a(f"ds_write_b128 v{VMG}, {vr(OA[1]+4,4)} offset:1024")
    a(f"ds_write_b32 v{T1_}, v{OA[1]+8} offset:2048")
    a("s_branch L_mg2")
    a("L_mg1:")
    a(f"ds_write_b128 v{VMG}, {vr(OA[0],4)}")
    a(f"ds_write_b128 v{VMG}, {vr(OA[0]+4,4)} offset:1024")
    a(f"ds_write_b32 v{T1_}, v{OA[0]+8} offset:2048")
    a("s_waitcnt lgkmcnt(0)")
    for i in range(9): a(f"v_mov_b32 v{OA[0]+i}, v{OA[1]+i}")
    for i in range(4): a(f"v_mov_b32 v{Q0+i}, v{Q1+i}")
    a("L_mg2:")
    a(f"s_mul_i32 s60, s52, {MBLK}")
    a(f"s_add_u32 s60, s60, {MERGE_LDS}")
    a(f"v_add_u32 v{VMG}, s60, v2")
    a(f"v_add_u32 v{MX}, s60, v{MX}")
    a("s_waitcnt lgkmcnt(0)")
    a("s_barrier")
    a(f"ds_read_b128 {vr(SB[0],4)}, v{VMG}")
    a(f"ds_read_b128 {vr(SB[0]+4,4)}, v{VMG} offset:1024")
    a(f"ds_read_b32 v{SB[0]+8}, v{MX} offset:2048")
    a(f"s_add_u32 s66, s65, {OF}")
    a("s_waitcnt lgkmcnt(0)")
    for i in range(9): a(f"v_add_f32 v{OA[0]+i}, v{OA[0]+i}, v{SB[0]+i}")
    a("L_A_fin:")
    finalize(a, OA[0], GA, "s29", "L_A_fb", "s66")

def phase2_slow(a):
    K0 = KVB[0]
    def maxtile(Q, C, vk):
        a(f"buffer_load_dwordx4 {vr(K0,4)}, v{vk}, s[16:19], s67 offen {sc}")
        a("s_waitcnt vmcnt(0)")
        a(f"v_mfma_f32_32x32x16_bf16 {vr(SB[0],16)}, {vr(K0,4)}, {vr(Q,4)}, {C}")
        a("s_nop 15")
        for i in range(8): a(f"v_max3_f32 v{MX}, v{SB[0]+2*i}, v{SB[0]+2*i+1}, v{MX}")
    a("L_A_fb:")
    a("s_mov_b32 s29, 1")
    a(f"v_mov_b32 v{MX}, v{NI}")
    a("s_mov_b32 s67, 0")
    a("L_A_fb1:")
    maxtile(Q0, "0", VK)
    a("s_add_u32 s67, s67, 2048")
    a("s_cmp_lt_u32 s67, 131072")
    a("s_cbranch_scc1 L_A_fb1")
    crossop(a, "v_max_f32", MX, T0_)
    for r in range(16): a(f"v_sub_f32 v{CF+r}, 0, v{MX}")
    for r in range(16): a(f"v_mov_b32 v{OA[0]+r}, 0")
    a("s_mov_b32 s67, 0")
    a("L_A_fb2:")
    kv_loads(a, K0, VK, VV, "s67", 0)
    a("s_waitcnt vmcnt(0)")
    a(f"v_mfma_f32_32x32x16_bf16 {vr(SB[0],16)}, {vr(K0,4)}, {vr(Q0,4)}, {vr(CF,16)}")
    a("s_nop 15")
    for i in range(16): a(f"v_exp_f32 v{SB[0]+i}, v{SB[0]+i}")
    a("s_nop 0")
    for i in range(8): a(f"v_cvt_pk_bf16_f32 v{P+i}, v{SB[0]+2*i}, v{SB[0]+2*i+1}")
    a("s_nop 1")
    a(f"v_mfma_f32_32x32x16_bf16 {vr(OA[0],16)}, {vr(K0+4,4)}, {vr(P,4)}, {vr(OA[0],16)}")
    a(f"v_mfma_f32_32x32x16_bf16 {vr(OA[0],16)}, {vr(K0+8,4)}, {vr(P+4,4)}, {vr(OA[0],16)}")
    a("s_nop 15")
    a("s_add_u32 s67, s67, 2048")
    a("s_cmp_lt_u32 s67, 131072")
    a("s_cbranch_scc1 L_A_fb2")
    a("s_branch L_A_fin")
    a("L_B_fb:")
    a("s_mov_b32 s28, 1")
    a(f"v_mov_b32 v{MX}, v{NI}")
    for r in range(16): a(f"v_mov_b32 v{CFB+r}, v{NB}")
    a("s_lshl_b32 s67, s58, 11")
    maxtile(QB, vr(CD,16), VKB)
    a("s_add_i32 s67, s58, -8")
    a("s_max_i32 s67, s67, 0")
    a("s_lshl_b32 s67, s67, 11")
    maxtile(QB, vr(CR,16), VKB)
    a("s_min_u32 s60, s58, 7")
    a("s_lshl_b32 s67, s58, 11")
    a("L_B_fb1:")
    a("s_cmp_eq_u32 s60, 0")
    a("s_cbranch_scc1 L_B_fb2")
    a("s_sub_u32 s67, s67, 2048")
    maxtile(QB, vr(CFB,16), VKB)
    a("s_sub_u32 s60, s60, 1")
    a("s_branch L_B_fb1")
    a("L_B_fb2:")
    crossop(a, "v_max_f32", MX, T0_)
    a(f"v_sub_f32 v{NB}, v{NB}, v{MX}")
    a("s_branch L_B_start")

def phase3(a, st):
    OFB = 108; OFA = 20; AC = [200, 216]; WB = [232, 240]
    a("v_lshrrev_b32 v9, 5, v1")
    a("v_bfe_u32 v10, v1, 2, 2")
    a("v_lshl_add_u32 v11, v9, 2, v10")
    a("v_lshlrev_b32 v4, 7, v11")
    a("v_and_b32 v11, 1, v1")
    a("v_lshl_add_u32 v4, v11, 5, v4")
    a("v_bfe_u32 v11, v1, 4, 1")
    a("v_lshl_add_u32 v4, v11, 4, v4")
    a("v_bfe_u32 v11, v1, 1, 1")
    a("v_lshl_add_u32 v4, v11, 3, v4")
    a("s_lshl_b32 s60, s14, 14")
    a("v_add_u32 v4, s60, v4")
    a("v_bfe_u32 v11, v1, 3, 1")
    a("v_lshlrev_b32 v11, 6, v11")
    a("v_xor_b32 v12, 64, v11")
    a("v_add_u32 v5, v4, v12")
    a("v_add_u32 v4, v4, v11")
    a("v_add_u32 v13, 0x10000, v4")
    a("v_add_u32 v14, 0x10000, v5")
    a("s_lshl_b32 s61, s15, 7")
    srd(a, 24, 46, 2 << 20)
    a("s_lshl_b32 s64, s13, 15")
    a("s_lshl_b32 s65, s14, 11")
    a("s_add_u32 s65, s65, s64")
    a("v_add_u32 v6, s65, v2")
    a("s_lshl_b32 s65, s14, 13")
    a("s_add_u32 s65, s65, s64")
    a("v_add_u32 v7, s65, v2")
    a("v_and_b32 v8, 31, v1")
    a("v_lshlrev_b32 v8, 10, v8")
    a("v_lshl_add_u32 v8, v9, 5, v8")
    a("s_lshl_b32 s64, s23, 15")
    a("s_lshl_b32 s65, s12, 7")
    a("s_add_u32 s64, s64, s65")
    a("s_lshr_b32 s65, s14, 1")
    a("s_lshl_b32 s65, s65, 6")
    a("s_add_u32 s64, s64, s65")
    a("s_and_b32 s65, s14, 1")
    a("s_lshl_b32 s65, s65, 4")
    a("s_add_u32 s64, s64, s65")
    def reads(s):
        wb = WB[s & 1]; base = 4 if s < 8 else 13
        for ct in range(2):
            a(f"ds_read_b64_tr_b16 {vr(wb+4*ct,2)}, v{base+ct} offset:{(s&7)*2048}")
            a(f"ds_read_b64_tr_b16 {vr(wb+4*ct+2,2)}, v{base+ct} offset:{(s&7)*2048+1024}")
    reads(0)
    for s in range(16):
        if s == O_.pubo:
            a("s_waitcnt vmcnt(0)")
            st()
            lds_count(a, 12, 8, fo_off(a, FOA))
        if s == 8:
            a("s_barrier")
            a(f"s_add_u32 s60, s61, {FOA}")
            if O_.shp: poll_shared(a, 7, "s60", 40, 0)
            else: poll_flags(a, 7, "s60")
            st()
            o_loads(a, OFA, 0)
        if s + 1 < 16: reads(s + 1)
        if s < 8: a("s_waitcnt lgkmcnt(4)")
        else: a(f"s_waitcnt vmcnt({15 - s}) lgkmcnt({4 if s+1 < 16 else 0})")
        o = (OFB if s < 8 else OFA) + 4*(s & 7)
        for ct in range(2):
            a(f"v_mfma_f32_32x32x16_bf16 {vr(AC[ct],16)}, {vr(WB[s&1]+4*ct,4)}, {vr(o,4)}, {'0' if s == 0 else vr(AC[ct],16)}")
    a("s_nop 10")
    for owner in range(4):
        for q in range(2):
            a(f"ds_write_b128 v6, {vr(AC[owner>>1] + 8*(owner&1) + 4*q, 4)} offset:{owner*8192 + q*1024}")
    a("s_waitcnt lgkmcnt(0)")
    a("s_barrier")
    for src in range(4):
        for q in range(2):
            a(f"ds_read_b128 {vr(16 + src*8 + 4*q, 4)}, v7 offset:{src*2048 + q*1024}")
    a("s_waitcnt lgkmcnt(4)")
    for i in range(8): a(f"v_add_f32 v{16+i}, v{16+i}, v{24+i}")
    a("s_waitcnt lgkmcnt(0)")
    for i in range(8): a(f"v_add_f32 v{32+i}, v{32+i}, v{40+i}")
    for i in range(8): a(f"v_add_f32 v{16+i}, v{16+i}, v{32+i}")
    for i in range(4): a(f"v_cvt_pk_bf16_f32 v{48+i}, v{16+2*i}, v{17+2*i}")
    a("buffer_store_dwordx4 v[48:51], v8, s[24:27], s64 offen " + ["", "sc1", "nt", "sc0 sc1"][O_.outf])

def header():
    hdr = open("gated_mix__mha_block__sliding_block__prompt.s.ref").read().split("\n")
    hdr = [l for l in hdr if l.startswith(";") and "@launch" not in l and "Override" not in l and "grid=ceil" not in l]
    return "\n".join(hdr) + "\n"

def main(out):
    a = Asm(); st = Stamper(a)
    prologue(a, st)
    if O_.codepf:
        a("s_cmp_lg_u32 s52, 3")
        a("s_cbranch_scc1 L_nopf")
        code_prefetch(a)
        a("L_nopf:")
    a("s_cmp_lt_u32 s52, 4")
    a("s_cbranch_scc1 L_comp")
    n0 = st.n
    phase1_loader(a, st)
    st()
    n1 = st.n
    a("s_branch L_p2")
    a("L_comp:")
    st.n = n0
    phase1_comp(a, st)
    assert st.n == n1, (st.n, n1)
    phase2(a, st)
    phase3(a, st)
    if O_.stamps:
        a("s_waitcnt vmcnt(0)"); st()
        if O_.dbgt:
            a("s_memrealtime s[100:101]")
            a("s_cmp_lg_u32 s2, 40")
            a("s_cbranch_scc1 L_end")
            a("s_cmp_lg_u32 s52, 4")
            a("s_cbranch_scc1 L_end")
            srd(a, 20, 48, 256)
            a("v_mov_b32 v250, 0")
            a("s_waitcnt lgkmcnt(0)")
            a("s_sub_u32 s100, s100, s98")
            a("s_sub_u32 s101, s98, s30")
            for i in range(1, st.n): a(f"s_sub_u32 s{72+2*i}, s{72+2*i}, s72")
            for i, sg in enumerate(["s100", "s101"] + [f"s{72+2*i}" for i in range(1, st.n)]):
                a(f"v_mov_b32 v252, {sg}")
                a(f"buffer_store_dword v252, v250, s[20:23], 0 offen offset:{8+4*i}")
        else: st.flush()
    a("L_end:")
    a("s_endpgm")
    phase2_slow(a)
    a("L_code_end:")
    body = a.text()
    check_hazards(body)
    txt = header() + "; @launch grid=(256,1,1) block=(512,1,1) lds=163840\n"
    txt += '.amdgcn_target "amdgcn-amd-amdhsa--gfx950"\n.text\n' + body
    txt += '.section .rodata,"a"\n' + kd(NAME, 256, 102)
    open(out, "w").write(txt)

if __name__ == "__main__":
    for o in sys.argv[2:]:
        if o == "st": O_.stamps = True
        elif o == "fb": O_.force_fb = True
        elif "=" in o:
            k, v = o.split("="); setattr(O_, k, int(v))
    main(sys.argv[1])
```

```python
import sys, struct
from asmlib import *

QF = 0
GO = (16 << 20) + 0x10000
KV = 4 << 20
OF = 12 << 20
FL = 16 << 20
FA = FL
FB = FL + 0x1000
FOA = FL + 0x2000
FOB = FL + 0x3000
TS = 20 << 20
WS_BYTES = 24 << 20
LOG2E = 1.4426950408889634
NEGINF = 0xff800000
def f2u(x): return struct.unpack("<I", struct.pack("<f", x))[0]
NAME = "gated_mix__mha_block__sliding_block__prompt_kernel"

class Opt:
    stamps = False; force_fb = False; prio = True; codepf = True; pubz = 20; D = 4; wopf = True; n1 = 3; pr1 = 2; pr0 = 1; shp = 1; slp = 2; hold = 1; tlb = 0; pubo = 3; outf = 2; dbgt = 0; xtra = 0; until = 0; early = 0
O_ = Opt()
sc = "sc1"

GW_LDS = 153600
MERGE_LDS = 131072; MBLK = 2176
CTL = 163840 - 64
SPIN = 1 << 18

class Stamper:
    def __init__(self, a): self.a = a; self.n = 0; self.kid = 0
    def __call__(self):
        if not O_.stamps: return
        assert self.n < 13
        self.a(f"s_memtime s[{72+2*self.n}:{73+2*self.n}]")
        if self.n == 0: self.a("s_memrealtime s[98:99]")
        self.a("s_waitcnt lgkmcnt(0)")
        self.n += 1
    def flush(self):
        if not O_.stamps: return
        a = self.a
        a("s_memrealtime s[100:101]")
        a("s_lshl_b32 s62, s2, 3")
        a("s_add_u32 s62, s62, s52")
        a("s_lshl_b32 s62, s62, 6")
        a(f"s_add_u32 s62, s62, {TS}")
        a("v_mov_b32 v250, 0")
        a("s_waitcnt lgkmcnt(0)")
        for i, sg in enumerate([f"s{72+2*i}" for i in range(self.n)] + ["-1"]*(13-self.n) + [str(self.n), "s98", "s100"]):
            a(f"v_mov_b32 v252, {sg}")
            a(f"buffer_store_dword v252, v250, s[16:19], s62 offen offset:{4*i}")
        a("s_waitcnt vmcnt(0)")

class VM:
    def __init__(self, a): self.a = a; self.q = []; self.done = 0
    def issue(self, tag): self.q.append(tag)
    def wait(self, tag):
        last = max(i for i, t in enumerate(self.q) if t == tag)
        if last + 1 > self.done:
            self.done = last + 1
            n = len(self.q) - last - 1
            assert n < 64
            self.a(f"s_waitcnt vmcnt({n})")

def lds_count(a, cnt_off, target=None, flag_soff_code=None, inc=1):
    a(f"v_mov_b32 v250, {CTL}")
    a(f"v_mov_b32 v251, {inc}")
    a("s_mov_b64 exec, 1")
    if flag_soff_code is None:
        a(f"ds_add_u32 v250, v251 offset:{cnt_off}")
    else:
        lab = a.label("pub")
        a(f"ds_add_rtn_u32 v251, v250, v251 offset:{cnt_off}")
        a("v_mov_b32 v252, s30")
        a("v_mov_b32 v253, s31")
        a("s_waitcnt lgkmcnt(0)")
        a("v_readfirstlane_b32 s59, v251")
        a("v_mov_b32 v250, 0")
        a("s_and_b32 s59, s59, 0xff")
        a(f"s_cmp_lg_u32 s59, {target-1}")
        a(f"s_cbranch_scc1 {lab}")
        flag_soff_code()
        a("buffer_store_dwordx2 v[252:253], v250, s[16:19], s59 offen sc1")
        a(f"{lab}:")
    a("s_mov_b64 exec, -1")

def lds_wait(a, cnt_off, target, four=False):
    lab = a.label("lw")
    if four:
        a("v_and_b32 v250, 3, v1")
        a("v_lshlrev_b32 v250, 2, v250")
        a(f"v_add_u32 v250, {CTL}, v250")
    else:
        a(f"v_mov_b32 v250, {CTL}")
    a(f"s_mov_b32 s59, {SPIN*4}")
    a(f"{lab}:")
    a(f"ds_read_b32 v251, v250 offset:{cnt_off}")
    a("s_waitcnt lgkmcnt(0)")
    a(f"v_cmp_gt_u32 vcc, {target}, v251")
    a(f"s_cbranch_vccz {lab}_ok")
    a("s_sleep 1")
    a("s_sub_u32 s59, s59, 1")
    a("s_cmp_lg_u32 s59, 0")
    a(f"s_cbranch_scc1 {lab}")
    a(f"{lab}_ok:")

def poll_shared(a, mask, soff, word, wave):
    lab = a.label("ps")
    a(f"s_cmp_lg_u32 s52, {wave}")
    a(f"s_cbranch_scc1 {lab}_w")
    poll_flags(a, mask, soff)
    lds_count(a, word)
    a(f"s_branch {lab}_d")
    a(f"{lab}_w:")
    lds_wait(a, word, 1)
    a(f"{lab}_d:")

def poll_flags(a, mask, soff):
    lab = a.label("poll")
    a(f"v_and_b32 v250, {mask}, v1")
    a("v_lshlrev_b32 v250, 3, v250")
    a(f"s_mov_b32 s59, {SPIN}")
    a(f"{lab}:")
    a(f"buffer_load_dwordx2 v[252:253], v250, s[16:19], {soff} offen sc1")
    a("s_waitcnt vmcnt(0)")
    a("v_cmp_ne_u64 vcc, s[30:31], v[252:253]")
    a(f"s_cbranch_vccz {lab}_ok")
    a(f"s_sleep {O_.slp}")
    a("s_sub_u32 s59, s59, 1")
    a("s_cmp_lg_u32 s59, 0")
    a(f"s_cbranch_scc1 {lab}")
    a(f"{lab}_ok:")

def tag_issue(a):
    a("v_mov_b32 v249, 0")
    a("buffer_load_dwordx2 v[254:255], v249, s[20:23], 0 offen sc1")
def tag_finish(a):
    lab = a.label("tag")
    a(f"s_mov_b32 s59, {SPIN}")
    a(f"{lab}:")
    a("v_cmp_eq_u32 vcc, 0, v255")
    a(f"s_cbranch_vccz {lab}_ok")
    a("s_sleep 1")
    a("buffer_load_dwordx2 v[254:255], v249, s[20:23], 0 offen sc1")
    a("s_waitcnt vmcnt(0)")
    a("s_sub_u32 s59, s59, 1")
    a("s_cmp_lg_u32 s59, 0")
    a(f"s_cbranch_scc1 {lab}")
    a(f"{lab}_ok:")
    a("v_readfirstlane_b32 s30, v254")
    a("v_readfirstlane_b32 s31, v255")

def flagoff(a, base):
    def f():
        a("s_lshl_b32 s59, s55, 8")
        a("s_lshl_b32 s60, s3, 3")
        a("s_add_u32 s59, s59, s60")
        a(f"s_add_u32 s59, s59, {base}")
    return f

XS = 16; WR = 144; ACC = [176, 192, 208, 224]; GR = 240

def prologue(a, st):
    a(f".globl {NAME}\n.p2align 8\n.type {NAME},@function\n{NAME}:")
    if O_.early: a("s_memrealtime s[96:97]")
    a("s_cmp_ge_u32 s2, 256")
    a("s_cbranch_scc1 L_end")
    a("s_load_dwordx16 s[32:47], s[0:1], 0")
    a("s_load_dwordx4 s[48:51], s[0:1], 64")
    a("v_lshrrev_b32 v2, 6, v0")
    a("v_and_b32 v1, 63, v0")
    a("v_readfirstlane_b32 s52, v2")
    a("v_lshlrev_b32 v2, 4, v1")
    a("s_and_b32 s53, s2, 7")
    a("s_lshr_b32 s54, s2, 3")
    st()
    a("s_and_b32 s55, s53, 1")
    a("s_lshl_b32 s55, s55, 2")
    a("s_and_b32 s56, s54, 3")
    a("s_add_u32 s55, s55, s56")
    a("s_lshr_b32 s56, s53, 1")
    a("s_lshl_b32 s56, s56, 2")
    a("s_bfe_u32 s57, s54, 0x20002")
    a("s_add_u32 s56, s56, s57")
    a("s_lshr_b32 s57, s54, 4")
    a("s_lshl_b32 s3, s56, 1")
    a("s_add_u32 s3, s3, s57")
    a("s_lshl_b32 s58, s55, 1")
    a("s_add_u32 s58, s58, s3")
    a("s_and_b32 s58, s58, 7")
    a("s_and_b32 s68, s52, 3")

def phase1_loader(a, st):
    a("v_lshrrev_b32 v5, 3, v1")
    a("s_lshl_b32 s59, s68, 3")
    a("v_add_u32 v5, s59, v5")
    a("v_and_b32 v7, 7, v1")
    a("v_bfe_u32 v6, v5, 1, 3")
    a("v_xor_b32 v6, v6, v7")
    a("v_lshlrev_b32 v3, 10, v5")
    a("v_lshl_add_u32 v3, v6, 4, v3")
    a("s_lshl_b32 s59, s56, 17")
    a("v_add_u32 v3, s59, v3")
    a("v_mul_u32_u24 v4, 3072, v5")
    a("v_bfe_u32 v6, v1, 4, 1")
    a("v_lshlrev_b32 v6, 2, v6")
    a("v_xor_b32 v6, v6, v7")
    a("v_lshl_add_u32 v4, v6, 4, v4")
    a("s_lshl_b32 s59, s55, 7")
    a("v_add_u32 v4, s59, v4")
    a("s_lshl_b32 s59, s57, 10")
    a("s_add_u32 s59, s59, 1024")
    a("v_add_u32 v9, s59, v4")
    a("v_mov_b32 v248, 0")
    a("s_lshl_b32 s71, s68, 10")
    a("s_mov_b32 s60, s58")
    a("s_mov_b32 s63, 0")
    a("s_cmp_lg_u32 s57, 0")
    a("s_waitcnt lgkmcnt(0)")
    a("s_cselect_b32 s24, s40, s34")
    a("s_cselect_b32 s25, s41, s35")
    a(f"s_mov_b32 s26, {hex(512*1536*2)}")
    a("s_mov_b32 s27, 0x00020000")
    srd(a, 8, 34, 512*1536*2)
    srd(a, 4, 32, 2 << 20)
    a("L_ld_loop:")
    a("s_lshl_b32 s61, s60, 7")
    a(f"s_mul_i32 s62, s60, {64*3072}")
    for i in range(2):
        a(f"s_add_u32 m0, s71, {16384 + i*4096}")
        a(f"s_add_u32 s70, s62, {i*32*3072}")
        a("buffer_load_dwordx4 v9, s[8:11], s70 offen lds")
        a(f"s_add_u32 m0, s71, {24576 + i*4096}")
        a("s_nop 0")
        a("buffer_load_dwordx4 v4, s[24:27], s70 offen lds")
    for i in range(4):
        a(f"s_add_u32 m0, s71, {i*4096}")
        a(f"s_add_u32 s70, s61, {i*32768}")
        a("buffer_load_dwordx4 v3, s[4:7], s70 offen lds")
    a("s_add_u32 s60, s60, 1")
    a("s_and_b32 s60, s60, 7")
    a("s_add_u32 s71, s71, 32768")
    a("s_and_b32 s71, s71, 0x1ffff")
    a("s_add_u32 s63, s63, 1")
    a("s_cmp_eq_u32 s63, 1")
    a("s_cbranch_scc1 L_ld_loop")
    a("s_waitcnt vmcnt(8)")
    a("s_barrier")
    a("s_cmp_lt_u32 s63, 8")
    a("s_cbranch_scc1 L_ld_loop")
    srd(a, 12, 40, 512*1536*2)
    srd(a, 16, 50, WS_BYTES)
    srd(a, 20, 48, 256)
    def kvb(j):
        a(f"s_mul_i32 s62, s60, {64*3072}")
        for i in range(2):
            a(f"s_add_u32 m0, s71, {j*8192 + i*4096}")
            a(f"s_add_u32 s70, s62, {i*32*3072}")
            a("buffer_load_dwordx4 v9, s[12:15], s70 offen lds")
        a("s_add_u32 s60, s60, 1")
        a("s_and_b32 s60, s60, 7")
    for j in range(4): kvb(j)
    a("s_lshl_b32 s59, s68, 2")
    a(f"s_add_u32 s59, s59, {CTL + 16}")
    a("v_mov_b32 v10, s59")
    a("s_waitcnt vmcnt(8)")
    a("s_barrier")
    st()
    if O_.hold == 2:
        a("s_waitcnt vmcnt(0)")
        a("v_mov_b32 v11, 1")
        a("ds_write_b32 v10, v11")
    if O_.hold: lds_wait(a, 4 if O_.hold < 3 else 0, 4)
    for j in range(4, 8): kvb(j)
    a("s_waitcnt vmcnt(8)")
    tag_issue(a)
    a("v_mov_b32 v11, 1")
    a("ds_write_b32 v10, v11")
    st()
    a("s_waitcnt vmcnt(0)")
    a("v_mov_b32 v11, 2")
    a("ds_write_b32 v10, v11")
    st()
    tag_finish(a)

def code_prefetch(a):
    a("s_getpc_b64 s[28:29]")
    a("L_pcref:")
    a("s_lshl_b32 s59, s54, 10")
    a("v_lshlrev_b32 v10, 7, v1")
    a("v_add_u32 v10, s59, v10")
    a("v_cmp_gt_u32 vcc, L_code_end-L_pcref, v10")
    a("s_and_b64 vcc, vcc, 0xff")
    a("v_mov_b32 v11, s29")
    a("s_and_saveexec_b64 s[26:27], vcc")
    a("s_cbranch_execz L_pf_skip")
    a("v_add_co_u32 v10, vcc, s28, v10")
    a("s_nop 1")
    a("v_addc_co_u32 v11, vcc, 0, v11, vcc")
    a("global_load_dword v247, v[10:11], off")
    a("L_pf_skip:")
    a("s_mov_b64 exec, s[26:27]")

def comp_setup(a):
    a("s_waitcnt lgkmcnt(0)")
    srd(a, 20, 48, 256)
    a("s_cmp_lg_u32 s52, 0")
    a("s_cbranch_scc1 L_notw0")
    srd(a, 24, 44, 1024)
    a("s_lshl_b32 s59, s58, 7")
    a("v_add_u32 v5, s59, v2")
    a("v_and_b32 v5, 0x3ff, v5")
    a(f"s_mov_b32 m0, {GW_LDS}")
    a(f"v_mov_b32 v250, {CTL}")
    a("buffer_load_dwordx4 v5, s[24:27], 0 offen lds")
    for i in range(4): a(f"v_mov_b32 v{252+i}, 0")
    a("ds_write_b128 v250, v[252:255]")
    a("ds_write_b128 v250, v[252:255] offset:16")
    a("ds_write_b128 v250, v[252:255] offset:32")
    a("s_cmp_lg_u32 s2, 0")
    a("s_cbranch_scc1 L_notag")
    if O_.early: a("s_mov_b64 s[28:29], s[96:97]")
    else: a("s_memrealtime s[28:29]")
    a("s_waitcnt lgkmcnt(0)")
    a("s_or_b32 s29, s29, 0x40000000")
    a("v_mov_b32 v254, s28")
    a("v_mov_b32 v255, s29")
    a("s_mov_b64 exec, 1")
    a("buffer_store_dwordx2 v[254:255], v252, s[20:23], 0 offen sc1")
    a("s_mov_b64 exec, -1")
    a("L_notag:")
    a("s_waitcnt vmcnt(0) lgkmcnt(0)")
    a("L_notw0:")
    if O_.tlb:
        a("s_cmp_lg_u32 s52, 2")
        a("s_cbranch_scc1 L_notlb")
        srd(a, 16, 50, WS_BYTES)
        a("v_mul_u32_u24 v10, 0x44000, v1")
        a("buffer_load_dword v247, v10, s[16:19], 0 offen sc1")
        srd(a, 24, 46, 2 << 20)
        a("v_lshlrev_b32 v10, 18, v1")
        a("buffer_load_dword v247, v10, s[24:27], 0 offen sc1")
        a("L_notlb:")
    a("v_and_b32 v10, 31, v1")
    a("s_lshl_b32 s59, s68, 12")
    a("v_lshlrev_b32 v11, 7, v10")
    a("v_add_u32 v11, s59, v11")
    a("v_bfe_u32 v12, v1, 1, 3")
    a("v_lshrrev_b32 v13, 5, v1")
    a("v_xor_b32 v12, v12, v13")
    a("v_lshl_add_u32 v5, v12, 4, v11")
    a("v_xor_b32 v6, 32, v5")
    a("v_xor_b32 v7, 64, v5")
    a("v_xor_b32 v8, 96, v5")
    a("v_bfe_u32 v10, v1, 2, 2")
    a("v_lshl_add_u32 v10, v13, 3, v10")
    a("v_lshlrev_b32 v9, 7, v10")
    a("v_bfe_u32 v10, v1, 3, 1")
    a("v_lshl_add_u32 v9, v10, 6, v9")
    a("v_bfe_u32 v10, v1, 4, 1")
    a("v_lshl_add_u32 v9, v10, 5, v9")
    a("v_lshlrev_b32 v3, 17, v10")
    a("v_and_b32 v10, 3, v1")
    a("v_lshl_add_u32 v9, v10, 3, v9")
    a("v_xor_b32 v4, 64, v9")
    a("s_lshl_b32 s69, s55, 8")
    a("s_lshl_b32 s59, s56, 2")
    a("s_add_u32 s59, s59, s68")
    a("s_add_u32 s59, s59, s69")
    a("s_lshl_b32 s70, s59, 11")
    a("v_lshl_add_u32 v3, v13, 8, v3")
    a("v_and_b32 v10, 15, v1")
    a("v_lshl_add_u32 v3, v10, 4, v3")
    a(f"s_mov_b32 s69, {hex(f2u(0.25*LOG2E))}")
    a("v_lshlrev_b32 v0, 4, v13")
    a(f"v_add_u32 v0, {GW_LDS}, v0")
    a("v_mov_b32 v14, 0")
    a("v_mov_b32 v15, 0")
    a("s_lshr_b32 s71, s70, 1")
    srd(a, 16, 50, WS_BYTES)

def pass_a(a, par, st):
    isv = par == 1; gate = False
    def reads(z):
        j = z // 4; s_ = z % 4
        if s_ == 0:
            a("s_barrier")
            if j == 7: st()
            if j and j % 2 == 0:
                for r in (4, 5, 6, 7, 8, 9): a(f"v_xor_b32 v{r}, 0x10000, v{r}")
        so = (j & 1) * 32768
        L = [f"ds_read_b128 {vr(XS + 4*z, 4)}, v{5 + s_} offset:{so}"]
        wr = WR + 16*(z % 2)
        for m in range(4):
            o = so + 16384 + (m >> 1)*8192 + s_*2048
            L.append(f"ds_read_b64_tr_b16 {vr(wr + 4*m, 2)}, v{4 if m & 1 else 9} offset:{o}")
            L.append(f"ds_read_b64_tr_b16 {vr(wr + 4*m + 2, 2)}, v{4 if m & 1 else 9} offset:{o + 512}")
        if gate: L.append(f"ds_read_b128 {vr(GR + 4*(z % 2), 4)}, v0 offset:{z*32}")
        return L
    for x in reads(0): a(x)
    for z in range(32):
        if z == 16: tag_issue(a)
        a("s_waitcnt lgkmcnt(0)")
        wr = WR + 16*(z % 2); x = vr(XS + 4*z, 4)
        R = None
        for m in range(4):
            w = vr(wr + 4*m, 4); v_ = isv and m < 2
            c = "0" if z == 0 else vr(ACC[m], 16)
            a(f"v_mfma_f32_32x32x16_bf16 {vr(ACC[m],16)}, {x if v_ else w}, {w if v_ else x}, {c}")
            if R is None: R = reads(z + 1) if z + 1 < 32 else []
            for y in R[:4]: a(y)
            R = R[4:]
            if gate and m >= 2:
                for i in (2*(m-2), 2*(m-2)+1): a(f"v_dot2c_f32_bf16 v{14 + (i & 1)}, v{XS+4*z+i}, v{GR+4*(z%2)+i}")
    a("v_xor_b32 v4, 0x10000, v4")
    a("v_xor_b32 v9, 0x10000, v9")

def pass_b(a, isv, waits, gate):
    GB4 = 208
    nr = 5 if gate else 4
    def reads(z):
        if z in waits: waits[z]()
        wr = WR + 8*(z % 4)
        L = []
        for ft in range(2):
            L.append(f"ds_read_b64_tr_b16 {vr(wr + 4*ft, 2)}, v{4 if ft else 9} offset:{z*2048}")
            L.append(f"ds_read_b64_tr_b16 {vr(wr + 4*ft + 2, 2)}, v{4 if ft else 9} offset:{z*2048 + 512}")
        if gate: L.append(f"ds_read_b128 {vr(GB4 + 4*(z % 4), 4)}, v0 offset:{z*32}")
        return L
    PF = 3
    for z in range(PF):
        for x in reads(z): a(x)
    for z in range(32):
        R = reads(z + PF) if z + PF < 32 else []
        a(f"s_waitcnt lgkmcnt({nr * (min(z + PF, 32) - z - 1)})")
        wr = WR + 8*(z % 4); x = vr(XS + 4*z, 4)
        for ft in range(2):
            w = vr(wr + 4*ft, 4)
            c = "0" if z == 0 else vr(ACC[ft], 16)
            a(f"v_mfma_f32_32x32x16_bf16 {vr(ACC[ft],16)}, {x if isv else w}, {w if isv else x}, {c}")
            if gate:
                for i in (2*ft, 2*ft+1): a(f"v_dot2c_f32_bf16 v{14 + (i & 1)}, v{XS+4*z+i}, v{GB4+4*(z%4)+i}")
            for y in (R[:2] if ft == 0 else R[2:]): a(y)

def kv_epilogue(a, isv, acc, b):
    for ft in range(2):
        c = acc[ft]
        for i in range(8): a(f"v_cvt_pk_bf16_f32 v{c+i}, v{c+2*i}, v{c+2*i+1}")
        if not isv:
            for e in range(2):
                a(f"s_add_u32 s59, s70, {KV + (b*32 + 2*ft + e)*131072}")
                a(f"buffer_store_dwordx4 {vr(c+4*e,4)}, v2, s[16:19], s59 offen {sc}")
        else:
            a(f"s_add_u32 s59, s70, {KV + (b*32 + 2*ft)*131072}")
            a(f"buffer_store_dwordx4 {vr(c,4)}, v3, s[16:19], s59 offen offset:1024 {sc}")
            a(f"buffer_store_dwordx4 {vr(c+4,4)}, v3, s[16:19], s59 offen offset:1536 {sc}")

def q_epilogue(a, b):
    for ft in range(2):
        c = ACC[2 + ft]
        for i in range(16): a(f"v_mul_f32 v{c+i}, s69, v{c+i}")
        for i in range(8): a(f"v_cvt_pk_bf16_f32 v{c+i}, v{c+2*i}, v{c+2*i+1}")
        for e in range(2):
            a(f"s_add_u32 s59, s71, {QF + (b*32 + 2*ft + e)*65536}")
            a(f"buffer_store_dwordx4 {vr(c+4*e,4)}, v2, s[16:19], s59 offen {sc}")

DKV = 232
DQ = [208, 224]
DADR = 248
def phase1_comp(a, st):
    comp_setup(a)
    n0 = st.n
    lw = lambda lvl: (lambda: lds_wait(a, 16, lvl, four=True))
    a("s_cmp_lg_u32 s57, 0")
    a("s_cbranch_scc1 L_p1_v")
    for par in (0, 1):
        if par: a("L_p1_v:"); st.n = n0
        pass_a(a, par, st)
        a("s_nop 7")
        kv_epilogue(a, par == 1, ACC[:2], 0)
        if par == 0: q_epilogue(a, 0)
        lds_count(a, 4)
        st()
        if par == 1:
            for ft in range(2):
                c = ACC[2 + ft]
                for i in range(16): a(f"v_mul_f32 v{c+i}, s69, v{c+i}")
                for i in range(8): a(f"v_cvt_pk_bf16_f32 v{c+i}, v{c+2*i}, v{c+2*i+1}")
        else:
            a("v_mov_b32 v10, 0")
            a("v_mov_b32 v11, 0")
            def gr(bt):
                for i in range(4): a(f"ds_read_b128 {vr(WR + 16*(bt & 1) + 4*i, 4)}, v0 offset:{(4*bt + i)*32}")
            gr(0)
            for bt in range(8):
                if bt < 7: gr(bt + 1)
                a(f"s_waitcnt lgkmcnt({4 if bt < 7 else 0})")
                for i in range(16): a(f"v_dot2c_f32_bf16 v{(14, 15, 10, 11)[i & 3]}, v{XS + 16*bt + i}, v{WR + 16*(bt & 1) + i}")
        a("s_waitcnt vmcnt(0)")
        st()
        tag_finish(a)
        lds_count(a, 0, 4, flagoff(a, FA))
        if O_.prio: a("s_setprio 3")
        pass_b(a, par == 1, {0: lw(1), 16: lw(2)}, False)
        if par == 0:
            a(f"v_and_b32 v{DADR}, 31, v1")
            a(f"v_lshlrev_b32 v{DADR}, 2, v{DADR}")
            a("v_add_f32 v10, v10, v11")
            a("v_add_f32 v14, v14, v15")
            a("v_add_f32 v14, v14, v10")
            crossop(a, "v_add_f32", 14, 15)
            a(f"v_mul_f32 v14, {hex(f2u(-LOG2E))}, v14")
            a("v_exp_f32 v14, v14")
            a("s_nop 0")
            a("v_add_f32 v14, 1.0, v14")
            a(f"v_rcp_f32 v{DQ[0]}, v14")
        else:
            a(f"v_mov_b32 v{DADR}, v3")
            a("s_nop 10")
        for ft in range(2):
            for i in range(8): a(f"v_cvt_pk_bf16_f32 v{DKV+8*ft+i}, v{ACC[ft]+2*i}, v{ACC[ft]+2*i+1}")
        if par == 0: a("s_branch L_p1_end")
    a("L_p1_end:")
    a("s_mov_b32 s0, s70")
    a("s_mov_b32 s1, s57")
    a("s_lshl_b32 s59, s56, 2")
    a("s_add_u32 s59, s59, s68")
    a("s_lshl_b32 s59, s59, 7")
    a("s_lshl_b32 s60, s55, 13")
    a("s_add_u32 s33, s59, s60")
    st()

def deferred_stores(a):
    a("s_cmp_lg_u32 s1, 0")
    a("s_cbranch_scc1 L_def_v")
    for i in range(4):
        a(f"s_add_u32 s59, s0, {KV + (32 + i)*131072}")
        a(f"buffer_store_dwordx4 {vr(DKV+4*i,4)}, v2, s[16:19], s59 offen {sc}")
    a(f"s_add_u32 s59, s33, {GO}")
    a(f"buffer_store_dword v{DQ[0]}, v{DADR}, s[16:19], s59 offen {sc}")
    a("s_branch L_def_done")
    a("L_def_v:")
    for ft in range(2):
        a(f"s_add_u32 s59, s0, {KV + (32 + 2*ft)*131072}")
        a(f"buffer_store_dwordx4 {vr(DKV+8*ft,4)}, v{DADR}, s[16:19], s59 offen offset:1024 {sc}")
        a(f"buffer_store_dwordx4 {vr(DKV+8*ft+4,4)}, v{DADR}, s[16:19], s59 offen offset:1536 {sc}")
    a("s_lshr_b32 s60, s0, 1")
    for i in range(4):
        a(f"s_add_u32 s59, s60, {QF + (32 + i)*65536}")
        a(f"buffer_store_dwordx4 {vr(DQ[i>>1]+4*(i&1),4)}, v2, s[16:19], s59 offen {sc}")
    a("L_def_done:")

Q0 = 8; Q1 = 12; QB = 16
SB = [20, 36]; P = 52; OA = [60, 76]; CF = 92; CD = 108; CR = 124
NA = 140; NB = 141; GA = 142; GB_ = 143; VK = 144; VV = 145; NI = 146; NBF = 147; MX = 148; VKB = 149; VVB = 150; T0_ = 151; T1_ = 5; VMG = 6; VWO = 7
KVB = [152 + 12*i for i in range(4)]; OB = 200; CFB = 216

def kv_loads(a, buf, vk, vv, soff, off):
    a(f"buffer_load_dwordx4 {vr(buf,4)}, v{vk}, s[16:19], {soff} offen offset:{off} {sc}")
    a("s_mov_b64 exec, s[24:25]")
    a(f"buffer_load_dwordx4 {vr(buf+4,4)}, v{vv}, s[16:19], {soff} offen offset:{off+1024} {sc}")
    a(f"buffer_load_dwordx4 {vr(buf+8,4)}, v{vv}, s[16:19], {soff} offen offset:{off+1536} {sc}")
    a("s_mov_b64 exec, -1")

def tstep(a, S, Sn, pv1, qk, pv0, after_pv1=None, before_qk=None, after_pv0=None):
    def E(i): a(f"v_exp_f32 v{S+i}, v{S+i}")
    def C(i): a(f"v_cvt_pk_bf16_f32 v{P+i}, v{S+2*i}, v{S+2*i+1}")
    E(0); E(1)
    if pv1: a(f"v_mfma_f32_32x32x16_bf16 {vr(pv1[0],16)}, {vr(pv1[1],4)}, {vr(P+4,4)}, {vr(pv1[0],16)}")
    if after_pv1: after_pv1()
    E(2); E(3); C(0); E(4); E(5); C(1)
    if before_qk: before_qk()
    if qk: a(f"v_mfma_f32_32x32x16_bf16 {vr(Sn,16)}, {vr(qk[0],4)}, {vr(qk[1],4)}, {vr(qk[2],16)}")
    E(6); E(7); C(2); E(8); E(9); C(3); E(10); E(11)
    a(f"v_mfma_f32_32x32x16_bf16 {vr(pv0[0],16)}, {vr(pv0[1],4)}, {vr(P,4)}, {'0' if pv0[2] else vr(pv0[0],16)}")
    if after_pv0: after_pv0()
    C(4); E(12); E(13); C(5); E(14); E(15); C(6); C(7)

def finalize(a, O, gate, flag_sgpr, fb_label, sofs):
    a(f"v_rcp_f32 v{T0_}, v{O+8}")
    a(f"v_cmp_gt_f32 s[60:61], s26, v{O+8}")
    a(f"v_mul_f32 v{T0_}, v{gate}, v{T0_}")
    for i in range(8): a(f"v_mul_f32 v{O+i}, v{T0_}, v{O+i}")
    a(f"v_add_f32 v{T1_}, |v{O}|, |v{O+1}|")
    for i in range(2, 8): a(f"v_add_f32 v{T1_}, v{T1_}, |v{O+i}|")
    a(f"v_cmp_gt_f32 s[62:63], s27, v{T1_}")
    for i in range(4): a(f"v_cvt_pk_bf16_f32 v{O+12+i}, v{O+2*i}, v{O+2*i+1}")
    a("s_and_b64 s[60:61], s[60:61], s[62:63]")
    a("s_cmp_eq_u64 s[60:61], -1")
    a(f"s_cselect_b32 s60, 1, {flag_sgpr}")
    a("s_cmp_eq_u32 s60, 0")
    a(f"s_cbranch_scc1 {fb_label}")
    a(f"buffer_store_dwordx4 {vr(O+12,4)}, v2, s[16:19], {sofs} offen {sc}")

def crossop(a, op, reg, tmp):
    a(f"v_mov_b32 v{tmp}, v{reg}")
    a("s_nop 1")
    a(f"v_permlane32_swap_b32 v{reg}, v{tmp}")
    a("s_nop 1")
    a(f"{op} v{reg}, v{reg}, v{tmp}")

def p3_roles(a):
    a("s_lshl_b32 s15, s53, 2")
    a("s_and_b32 s59, s54, 3")
    a("s_add_u32 s15, s15, s59")
    a("s_lshr_b32 s12, s54, 2")
    a("s_and_b32 s13, s52, 1")
    a("s_lshr_b32 s14, s52, 1")
    a("s_lshl_b32 s23, s15, 1")
    a("s_add_u32 s23, s23, s13")
    srd(a, 4, 36, 512*512*2)
    srd(a, 8, 42, 512*512*2)
    a("s_lshl_b32 s20, s14, 17")
    a("s_lshl_b32 s59, s13, 13")
    a("s_add_u32 s20, s20, s59")
    a("s_lshl_b32 s59, s12, 7")
    a("s_add_u32 s20, s20, s59")
    a("s_lshl_b32 s21, s14, 14")
    a("s_lshl_b32 s59, s13, 10")
    a("s_add_u32 s21, s21, s59")
    a(f"v_lshrrev_b32 v{T0_}, 3, v1")
    a(f"v_lshlrev_b32 v{VWO}, 10, v{T0_}")
    a(f"v_bfe_u32 v{T0_}, v1, 4, 1")
    a(f"v_lshlrev_b32 v{T0_}, 2, v{T0_}")
    a(f"v_and_b32 v{T1_}, 7, v1")
    a(f"v_xor_b32 v{T0_}, v{T0_}, v{T1_}")
    a(f"v_lshl_add_u32 v{VWO}, v{T0_}, 4, v{VWO}")

def wo_dma(a, i):
    a(f"s_add_u32 s59, s12, {i}")
    a("s_and_b32 s59, s59, 7")
    a("s_lshl_b32 s59, s59, 14")
    a(f"s_add_u32 m0, s21, {i*2048}")
    a("s_add_u32 s59, s59, s20")
    a(f"buffer_load_dwordx4 v{VWO}, s[8:11], s59 offen lds")
    a(f"s_add_u32 m0, s21, {65536 + i*2048}")
    a("s_nop 0")
    a(f"buffer_load_dwordx4 v{VWO}, s[4:7], s59 offen lds")

def o_loads(a, dst, b):
    a("s_lshl_b32 s63, s14, 19")
    a("s_lshl_b32 s59, s23, 10")
    a("s_add_u32 s63, s63, s59")
    a(f"s_add_u32 s63, s63, {OF + b*32*65536}")
    for i in range(8):
        a(f"s_add_u32 s59, s12, {i}")
        a("s_and_b32 s59, s59, 7")
        a("s_lshl_b32 s59, s59, 16")
        a("s_add_u32 s59, s59, s63")
        a(f"buffer_load_dwordx4 {vr(dst+4*i,4)}, v2, s[16:19], s59 offen {sc}")

def fo_off(a, base):
    def f():
        a("s_lshl_b32 s59, s54, 7")
        a("s_lshl_b32 s60, s53, 3")
        a("s_add_u32 s59, s59, s60")
        a(f"s_add_u32 s59, s59, {base}")
    return f

def phase2(a, st):
    D = O_.D
    a("L_p2:")
    a("s_lshl_b32 s56, s53, 2")
    a("s_add_u32 s69, s68, s56")
    a("s_lshr_b32 s56, s52, 2")
    a("s_lshl_b32 s57, s54, 1")
    a("s_add_u32 s58, s57, s56")
    a("s_lshl_b32 s59, s69, 6")
    a("s_add_u32 s65, s59, s58")
    a("s_lshl_b32 s65, s65, 10")
    a("s_add_u32 s64, s59, s57")
    a("s_lshl_b32 s64, s64, 10")
    a("s_mov_b32 s24, 0x0000ffff")
    a("s_mov_b32 s25, 0x0000ffff")
    p3_roles(a)
    a("s_mov_b32 s60, 0x00110000")
    a("s_mov_b32 s61, 0x00110000")
    a(f"v_mov_b32 v{T0_}, 0x3f803f80")
    a(f"v_cndmask_b32 v{T0_}, 0, v{T0_}, s[60:61]")
    for b in KVB[:D]:
        for i in range(8): a(f"v_mov_b32 v{b+4+i}, v{T0_}")
    a("s_lshl_b32 s60, s69, 17")
    a(f"s_add_u32 s60, s60, {KV}")
    a(f"v_add_u32 v{VK}, s60, v2")
    a(f"v_lshrrev_b32 v{T0_}, 5, v1")
    a(f"v_lshlrev_b32 v{T0_}, 8, v{T0_}")
    a(f"v_and_b32 v{T1_}, 15, v1")
    a(f"v_lshl_add_u32 v3, v{T1_}, 4, v{T0_}")
    a(f"v_add_u32 v{VV}, s60, v3")
    a(f"s_add_u32 s60, s60, {32*131072}")
    a(f"v_add_u32 v{VKB}, s60, v2")
    a(f"v_add_u32 v{VVB}, s60, v3")
    a(f"s_mov_b32 s26, {hex(f2u(2.0**64) if not O_.force_fb else f2u(0.5))}")
    a("s_mov_b32 s27, 0x7f800000")
    a("s_mov_b32 s28, 0")
    a("s_mov_b32 s29, 0")
    a(f"v_mov_b32 v{NI}, {hex(NEGINF)}")
    for r in range(16): a(f"v_mov_b32 v{OA[0]+r}, 0")
    for r in range(16): a(f"v_mov_b32 v{OA[1]+r}, 0")
    a(f"v_mov_b32 v{NA}, 0")
    a(f"v_mov_b32 v{NB}, 0")
    a("s_lshl_b32 s22, s54, 12")
    a("s_lshl_b32 s60, s56, 16")
    a("s_add_u32 s22, s22, s60")
    a("s_and_b32 s66, s22, 0x1ffff")
    a(f"s_mov_b32 s67, {O_.n1}")
    a("s_mov_b32 s70, 0")
    a("s_cmp_lg_u32 s56, 0")
    a(f"s_cselect_b32 s71, -1, {O_.n1 - 1}")
    a("s_lshl_b32 s60, s53, 8")
    a(f"s_add_u32 s60, s60, {FA}")
    st()
    if O_.shp: poll_shared(a, 31, "s60", 36, 4)
    else: poll_flags(a, 31, "s60")
    st()
    a(f"buffer_load_dwordx4 {vr(Q0,4)}, v2, s[16:19], s64 offen {sc}")
    a(f"buffer_load_dwordx4 {vr(Q1,4)}, v2, s[16:19], s64 offen offset:1024 {sc}")
    a("s_lshl_b32 s60, s57, 11")
    a(f"buffer_load_dwordx4 {vr(SB[1],4)}, v{VK}, s[16:19], s60 offen {sc}")
    a(f"buffer_load_dwordx4 {vr(SB[1]+4,4)}, v{VK}, s[16:19], s60 offen offset:2048 {sc}")
    a("L_A_entry:")
    for n in range(D - 1):
        if n and n % 2 == 0:
            a("s_add_u32 s66, s66, 4096")
            a("s_and_b32 s66, s66, 0x1ffff")
        kv_loads(a, KVB[n], VK, VV, "s66", 2048 * (n % 2))
    for r in range(4): a(f"v_mov_b32 v{P+4+r}, 0")
    a(f"s_waitcnt vmcnt({3*(D-1)})")
    a("s_cmp_lg_u32 s70, 0")
    a("s_cbranch_scc1 L_A_seg2")
    for i in range(4): a(f"v_dot2c_f32_bf16 v{NA}, v{Q0+i}, v{SB[1]+i}")
    a("s_nop 2")
    for i in range(4): a(f"v_dot2c_f32_bf16 v{NB}, v{Q1+i}, v{SB[1]+4+i}")
    a(f"v_mov_b32 v{T0_}, v{NA}")
    a("s_nop 1")
    a(f"v_mov_b32 v{T1_}, v{NB}")
    a(f"v_permlane32_swap_b32 v{NA}, v{T0_}")
    a("s_nop 0")
    a(f"v_permlane32_swap_b32 v{NB}, v{T1_}")
    a("s_nop 1")
    a(f"v_add_f32 v{NA}, v{NA}, v{T0_}")
    a(f"v_add_f32 v{NB}, v{NB}, v{T1_}")
    a(f"v_max_f32 v{NA}, -v{NA}, -v{NB}")
    for r in range(16): a(f"v_mov_b32 v{CF+r}, v{NA}")
    if O_.prio: a("s_setprio 3")
    st()
    a(f"s_waitcnt vmcnt({3*(D-2)})")
    a("s_cmp_lg_u32 s56, 0")
    a("s_cbranch_scc1 L_A_wo")
    deferred_stores(a)
    a("s_branch L_A_go")
    a("L_A_wo:")
    if O_.wopf:
        a(f"v_lshlrev_b32 v{T0_}, 10, v1")
        a("s_and_b32 s59, s68, 1")
        a("s_lshl_b32 s59, s59, 18")
        a("s_lshl_b32 s60, s12, 7")
        a("s_add_u32 s59, s59, s60")
        a("s_and_b32 s60, s54, 3")
        a("s_lshl_b32 s60, s60, 16")
        a("s_add_u32 s59, s59, s60")
        a("s_cmp_lt_u32 s68, 2")
        a("s_cbranch_scc1 L_p2_woa")
        a(f"buffer_load_dword v249, v{T0_}, s[8:11], s59 offen")
        a("s_branch L_p2_nowo")
        a("L_p2_woa:")
        a(f"buffer_load_dword v249, v{T0_}, s[4:7], s59 offen")
        a("L_p2_nowo:")
    a("s_branch L_A_go")
    a("L_A_seg2:")
    a("s_waitcnt vmcnt(0)")
    lds_count(a, 32, 8, fo_off(a, FOB))
    if O_.prio: a("s_setprio 2")
    a("L_A_go:")
    a(f"v_mfma_f32_32x32x16_bf16 {vr(SB[0],16)}, {vr(KVB[0],4)}, {vr(Q0,4)}, {vr(CF,16)}")
    a("s_nop 11")
    a(".p2align 3")
    a("L_A_loop:")
    for n in range(D):
        cur = KVB[n]; prv = KVB[(n-1) % D]; nx = KVB[(n+1) % D]
        def ld(n=n, prv=prv):
            if (n + D - 1) % 2 == 0:
                a("s_add_u32 s66, s66, 4096")
                a("s_and_b32 s66, s66, 0x1ffff")
            kv_loads(a, prv, VK, VV, "s66", 2048 * ((n + D - 1) % 2))
        tstep(a, SB[0], SB[1], (OA[1], prv+8), (cur, Q1, CF), (OA[0], cur+4, False), after_pv1=ld)
        tstep(a, SB[1], SB[0], (OA[0], cur+8), (nx, Q0, CF), (OA[1], cur+4, False), before_qk=lambda: a(f"s_waitcnt vmcnt({3*(D-2)})"))
    a("s_sub_u32 s67, s67, 1")
    a("s_cmp_eq_u32 s67, s71")
    a("s_cbranch_scc1 L_A_hook")
    a("s_cmp_lg_u32 s67, 0")
    a("s_cbranch_scc1 L_A_loop")
    a(f"v_mfma_f32_32x32x16_bf16 {vr(OA[1],16)}, {vr(KVB[D-1]+8,4)}, {vr(P+4,4)}, {vr(OA[1],16)}")
    a("s_cmp_lg_u32 s70, 0")
    a("s_cbranch_scc1 L_A_done")
    a("s_lshl_b32 s60, s53, 8")
    a(f"s_add_u32 s60, s60, {FB}")
    poll_flags(a, 31, "s60")
    a(f"s_add_u32 s60, s65, {QF + 32*65536}")
    a(f"buffer_load_dwordx4 {vr(QB,4)}, v2, s[16:19], s60 offen {sc}")
    a(f"v_and_b32 v{T0_}, 31, v1")
    a(f"v_lshlrev_b32 v{T0_}, 2, v{T0_}")
    a("s_lshl_b32 s60, s58, 7")
    a("s_lshl_b32 s61, s53, 13")
    a("s_add_u32 s60, s60, s61")
    a(f"s_add_u32 s60, s60, {GO}")
    a(f"buffer_load_dword v{GA}, v{T0_}, s[16:19], s60 offen {sc}")
    def btile_off(i):
        a(f"s_add_i32 s66, s58, {i-8}")
        a("s_max_i32 s66, s66, 0")
        a("s_lshl_b32 s66, s66, 11")
    a("L_B_start:")
    vm = VM(a)
    def bload(n):
        btile_off(8 - n)
        kv_loads(a, KVB[n % 4], VKB, VVB, "s66", 0)
        vm.issue(("k", n)); vm.issue(("t", n)); vm.issue(("t", n))
    for n in range(3): bload(n)
    a("s_cmp_lg_u32 s28, 0")
    a("s_cbranch_scc1 L_B_again")
    lds_wait(a, 8, 4)
    a(f"v_mov_b32 v{NB}, 0")
    a("s_waitcnt vmcnt(8)")
    for i in range(4): a(f"v_dot2c_f32_bf16 v{NB}, v{QB+i}, v{KVB[0]+i}")
    a(f"v_sub_f32 v{GB_}, 1.0, v{GA}")
    a("s_nop 1")
    crossop(a, "v_add_f32", NB, T0_)
    a(f"v_sub_f32 v{NB}, 0, v{NB}")
    a("L_B_again:")
    a("s_cmp_ge_u32 s58, 8")
    a("s_cselect_b64 s[60:61], -1, 0")
    a(f"v_cndmask_b32 v{NBF}, v{NI}, v{NB}, s[60:61]")
    for r in range(16):
        i0 = 8*(r >> 2) + (r & 3)
        sp = 60 + 2*(r & 1)
        a(f"s_mov_b32 s{sp}, {hex((0xffffffff << i0) & 0xffffffff)}")
        a(f"s_mov_b32 s{sp+1}, {hex((0xffffffff << (i0+4)) & 0xffffffff)}")
        a(f"v_cndmask_b32 v{CD+r}, v{NI}, v{NB}, s[{sp}:{sp+1}]")
        a(f"v_cndmask_b32 v{CR+r}, v{NBF}, v{NI}, s[{sp}:{sp+1}]")
    for r in range(16): a(f"v_mov_b32 v{CFB+r}, v{NB}")
    vm.wait(("t", 0))
    a(f"v_mfma_f32_32x32x16_bf16 {vr(SB[0],16)}, {vr(KVB[0],4)}, {vr(QB,4)}, {vr(CD,16)}")
    a("s_nop 11")
    rare = []
    for n in range(9):
        i = 8 - n
        cur = KVB[n % 4]; prv = KVB[(n-1) % 4]; nx = KVB[(n+1) % 4]
        def ld(n=n):
            if n + 3 <= 8: bload(n + 3)
        def pre(n=n, i=i):
            if n + 1 <= 8: vm.wait(("t", n + 1))
            if i - 1 >= 1:
                lb = a.label("bmask")
                a(f"s_cmp_eq_u32 s58, {8-i}")
                a(f"s_cbranch_scc1 {lb}")
                a(f"{lb}_r:")
                rare.append(lb)
        def wo(n=n):
            if n < 8: wo_dma(a, n)
        tstep(a, SB[n & 1], SB[(n+1) & 1], (OB, prv+8) if n > 0 else None,
              (nx, QB, CFB if i - 1 >= 1 else CR) if i >= 1 else None, (OB, cur+4, n == 0), after_pv1=ld, before_qk=pre, after_pv0=wo)
    a("s_nop 1")
    a(f"v_mfma_f32_32x32x16_bf16 {vr(OB,16)}, {vr(KVB[0]+8,4)}, {vr(P+4,4)}, {vr(OB,16)}")
    a(f"s_add_u32 s66, s65, {OF + 32*65536}")
    a("s_nop 10")
    finalize(a, OB, GB_, "s28", "L_B_fb", "s66")
    a(f"s_add_u32 s66, s22, {O_.n1 * D * 2048}")
    a("s_and_b32 s66, s66, 0x1ffff")
    a(f"s_mov_b32 s67, {32 // D - O_.n1 + O_.xtra}")
    a("s_mov_b32 s70, 1")
    a(f"s_mov_b32 s71, {O_.pr1}")
    st()
    a("s_branch L_A_entry")
    for lb in rare:
        a(f"{lb}:")
        a("s_nop 7")
        for r in range(16): a(f"v_mov_b32 v{CFB+r}, v{NI}")
        a("s_nop 1")
        a(f"s_branch {lb}_r")
    a("L_A_hook:")
    a("s_cmp_lg_u32 s70, 0")
    a("s_cbranch_scc1 L_A_prio")
    a("s_waitcnt vmcnt(0)")
    lds_count(a, 8, 4, flagoff(a, FB))
    a("s_branch L_A_loop")
    if True:
        a("L_A_prio:")
        a(f"s_cmp_eq_u32 s71, {O_.pr0}")
        a("s_cbranch_scc1 L_A_prio0")
        a(f"s_mov_b32 s71, {O_.pr0}")
        if O_.prio: a("s_setprio 1")
        a("s_lshl_b32 s60, s15, 7")
        a(f"s_add_u32 s60, s60, {FOB}")
        poll_flags(a, 7, "s60")
        o_loads(a, 108, 1)
        a("s_branch L_A_loop")
        a("L_A_prio0:")
        if O_.prio: a("s_setprio 0")
        a("s_branch L_A_loop")
    a("L_A_done:")
    st()
    a("s_xor_b32 s60, s52, 4")
    a(f"s_mul_i32 s60, s60, {MBLK}")
    a(f"s_add_u32 s60, s60, {MERGE_LDS}")
    a(f"v_add_u32 v{VMG}, s60, v2")
    a(f"v_and_b32 v{MX}, 31, v1")
    a(f"v_lshlrev_b32 v{MX}, 2, v{MX}")
    a(f"v_add_u32 v{T1_}, s60, v{MX}")
    a("s_nop 3")
    a("s_cmp_lg_u32 s56, 0")
    a("s_cbranch_scc1 L_mg1")
    a(f"ds_write_b128 v{VMG}, {vr(OA[1],4)}")
    a(f"ds_write_b128 v{VMG}, {vr(OA[1]+4,4)} offset:1024")
    a(f"ds_write_b32 v{T1_}, v{OA[1]+8} offset:2048")
    a("s_branch L_mg2")
    a("L_mg1:")
    a(f"ds_write_b128 v{VMG}, {vr(OA[0],4)}")
    a(f"ds_write_b128 v{VMG}, {vr(OA[0]+4,4)} offset:1024")
    a(f"ds_write_b32 v{T1_}, v{OA[0]+8} offset:2048")
    a("s_waitcnt lgkmcnt(0)")
    for i in range(9): a(f"v_mov_b32 v{OA[0]+i}, v{OA[1]+i}")
    for i in range(4): a(f"v_mov_b32 v{Q0+i}, v{Q1+i}")
    a("L_mg2:")
    a(f"s_mul_i32 s60, s52, {MBLK}")
    a(f"s_add_u32 s60, s60, {MERGE_LDS}")
    a(f"v_add_u32 v{VMG}, s60, v2")
    a(f"v_add_u32 v{MX}, s60, v{MX}")
    a("s_waitcnt lgkmcnt(0)")
    a("s_barrier")
    a(f"ds_read_b128 {vr(SB[0],4)}, v{VMG}")
    a(f"ds_read_b128 {vr(SB[0]+4,4)}, v{VMG} offset:1024")
    a(f"ds_read_b32 v{SB[0]+8}, v{MX} offset:2048")
    a(f"s_add_u32 s66, s65, {OF}")
    a("s_waitcnt lgkmcnt(0)")
    for i in range(9): a(f"v_add_f32 v{OA[0]+i}, v{OA[0]+i}, v{SB[0]+i}")
    a("L_A_fin:")
    finalize(a, OA[0], GA, "s29", "L_A_fb", "s66")

def phase2_slow(a):
    K0 = KVB[0]
    def maxtile(Q, C, vk):
        a(f"buffer_load_dwordx4 {vr(K0,4)}, v{vk}, s[16:19], s67 offen {sc}")
        a("s_waitcnt vmcnt(0)")
        a(f"v_mfma_f32_32x32x16_bf16 {vr(SB[0],16)}, {vr(K0,4)}, {vr(Q,4)}, {C}")
        a("s_nop 15")
        for i in range(8): a(f"v_max3_f32 v{MX}, v{SB[0]+2*i}, v{SB[0]+2*i+1}, v{MX}")
    a("L_A_fb:")
    a("s_mov_b32 s29, 1")
    a(f"v_mov_b32 v{MX}, v{NI}")
    a("s_mov_b32 s67, 0")
    a("L_A_fb1:")
    maxtile(Q0, "0", VK)
    a("s_add_u32 s67, s67, 2048")
    a("s_cmp_lt_u32 s67, 131072")
    a("s_cbranch_scc1 L_A_fb1")
    crossop(a, "v_max_f32", MX, T0_)
    for r in range(16): a(f"v_sub_f32 v{CF+r}, 0, v{MX}")
    for r in range(16): a(f"v_mov_b32 v{OA[0]+r}, 0")
    a("s_mov_b32 s67, 0")
    a("L_A_fb2:")
    kv_loads(a, K0, VK, VV, "s67", 0)
    a("s_waitcnt vmcnt(0)")
    a(f"v_mfma_f32_32x32x16_bf16 {vr(SB[0],16)}, {vr(K0,4)}, {vr(Q0,4)}, {vr(CF,16)}")
    a("s_nop 15")
    for i in range(16): a(f"v_exp_f32 v{SB[0]+i}, v{SB[0]+i}")
    a("s_nop 0")
    for i in range(8): a(f"v_cvt_pk_bf16_f32 v{P+i}, v{SB[0]+2*i}, v{SB[0]+2*i+1}")
    a("s_nop 1")
    a(f"v_mfma_f32_32x32x16_bf16 {vr(OA[0],16)}, {vr(K0+4,4)}, {vr(P,4)}, {vr(OA[0],16)}")
    a(f"v_mfma_f32_32x32x16_bf16 {vr(OA[0],16)}, {vr(K0+8,4)}, {vr(P+4,4)}, {vr(OA[0],16)}")
    a("s_nop 15")
    a("s_add_u32 s67, s67, 2048")
    a("s_cmp_lt_u32 s67, 131072")
    a("s_cbranch_scc1 L_A_fb2")
    a("s_branch L_A_fin")
    a("L_B_fb:")
    a("s_mov_b32 s28, 1")
    a(f"v_mov_b32 v{MX}, v{NI}")
    for r in range(16): a(f"v_mov_b32 v{CFB+r}, v{NB}")
    a("s_lshl_b32 s67, s58, 11")
    maxtile(QB, vr(CD,16), VKB)
    a("s_add_i32 s67, s58, -8")
    a("s_max_i32 s67, s67, 0")
    a("s_lshl_b32 s67, s67, 11")
    maxtile(QB, vr(CR,16), VKB)
    a("s_min_u32 s60, s58, 7")
    a("s_lshl_b32 s67, s58, 11")
    a("L_B_fb1:")
    a("s_cmp_eq_u32 s60, 0")
    a("s_cbranch_scc1 L_B_fb2")
    a("s_sub_u32 s67, s67, 2048")
    maxtile(QB, vr(CFB,16), VKB)
    a("s_sub_u32 s60, s60, 1")
    a("s_branch L_B_fb1")
    a("L_B_fb2:")
    crossop(a, "v_max_f32", MX, T0_)
    a(f"v_sub_f32 v{NB}, v{NB}, v{MX}")
    a("s_branch L_B_start")

def phase3(a, st):
    OFB = 108; OFA = 20; AC = [200, 216]; WB = [232, 240]
    a("v_lshrrev_b32 v9, 5, v1")
    a("v_bfe_u32 v10, v1, 2, 2")
    a("v_lshl_add_u32 v11, v9, 2, v10")
    a("v_lshlrev_b32 v4, 7, v11")
    a("v_and_b32 v11, 1, v1")
    a("v_lshl_add_u32 v4, v11, 5, v4")
    a("v_bfe_u32 v11, v1, 4, 1")
    a("v_lshl_add_u32 v4, v11, 4, v4")
    a("v_bfe_u32 v11, v1, 1, 1")
    a("v_lshl_add_u32 v4, v11, 3, v4")
    a("s_lshl_b32 s60, s14, 14")
    a("v_add_u32 v4, s60, v4")
    a("v_bfe_u32 v11, v1, 3, 1")
    a("v_lshlrev_b32 v11, 6, v11")
    a("v_xor_b32 v12, 64, v11")
    a("v_add_u32 v5, v4, v12")
    a("v_add_u32 v4, v4, v11")
    a("v_add_u32 v13, 0x10000, v4")
    a("v_add_u32 v14, 0x10000, v5")
    a("s_lshl_b32 s61, s15, 7")
    srd(a, 24, 46, 2 << 20)
    a("s_lshl_b32 s64, s13, 15")
    a("s_lshl_b32 s65, s14, 11")
    a("s_add_u32 s65, s65, s64")
    a("v_add_u32 v6, s65, v2")
    a("s_lshl_b32 s65, s14, 13")
    a("s_add_u32 s65, s65, s64")
    a("v_add_u32 v7, s65, v2")
    a("v_and_b32 v8, 31, v1")
    a("v_lshlrev_b32 v8, 10, v8")
    a("v_lshl_add_u32 v8, v9, 5, v8")
    a("s_lshl_b32 s64, s23, 15")
    a("s_lshl_b32 s65, s12, 7")
    a("s_add_u32 s64, s64, s65")
    a("s_lshr_b32 s65, s14, 1")
    a("s_lshl_b32 s65, s65, 6")
    a("s_add_u32 s64, s64, s65")
    a("s_and_b32 s65, s14, 1")
    a("s_lshl_b32 s65, s65, 4")
    a("s_add_u32 s64, s64, s65")
    def reads(s):
        wb = WB[s & 1]; base = 4 if s < 8 else 13
        for ct in range(2):
            a(f"ds_read_b64_tr_b16 {vr(wb+4*ct,2)}, v{base+ct} offset:{(s&7)*2048}")
            a(f"ds_read_b64_tr_b16 {vr(wb+4*ct+2,2)}, v{base+ct} offset:{(s&7)*2048+1024}")
    reads(0)
    for s in range(16):
        if s == O_.pubo:
            a("s_waitcnt vmcnt(0)")
            st()
            lds_count(a, 12, 8, fo_off(a, FOA))
        if s == 8:
            a("s_barrier")
            a(f"s_add_u32 s60, s61, {FOA}")
            if O_.shp: poll_shared(a, 7, "s60", 40, 0)
            else: poll_flags(a, 7, "s60")
            st()
            o_loads(a, OFA, 0)
        if s + 1 < 16: reads(s + 1)
        if s < 8: a("s_waitcnt lgkmcnt(4)")
        else: a(f"s_waitcnt vmcnt({15 - s}) lgkmcnt({4 if s+1 < 16 else 0})")
        o = (OFB if s < 8 else OFA) + 4*(s & 7)
        for ct in range(2):
            a(f"v_mfma_f32_32x32x16_bf16 {vr(AC[ct],16)}, {vr(WB[s&1]+4*ct,4)}, {vr(o,4)}, {'0' if s == 0 else vr(AC[ct],16)}")
    a("s_nop 10")
    for owner in range(4):
        for q in range(2):
            a(f"ds_write_b128 v6, {vr(AC[owner>>1] + 8*(owner&1) + 4*q, 4)} offset:{owner*8192 + q*1024}")
    a("s_waitcnt lgkmcnt(0)")
    a("s_barrier")
    for src in range(4):
        for q in range(2):
            a(f"ds_read_b128 {vr(16 + src*8 + 4*q, 4)}, v7 offset:{src*2048 + q*1024}")
    a("s_waitcnt lgkmcnt(4)")
    for i in range(8): a(f"v_add_f32 v{16+i}, v{16+i}, v{24+i}")
    a("s_waitcnt lgkmcnt(0)")
    for i in range(8): a(f"v_add_f32 v{32+i}, v{32+i}, v{40+i}")
    for i in range(8): a(f"v_add_f32 v{16+i}, v{16+i}, v{32+i}")
    for i in range(4): a(f"v_cvt_pk_bf16_f32 v{48+i}, v{16+2*i}, v{17+2*i}")
    a("buffer_store_dwordx4 v[48:51], v8, s[24:27], s64 offen " + ["", "sc1", "nt", "sc0 sc1"][O_.outf])

def header():
    hdr = open("gated_mix__mha_block__sliding_block__prompt.s.ref").read().split("\n")
    hdr = [l for l in hdr if l.startswith(";") and "@launch" not in l and "Override" not in l and "grid=ceil" not in l]
    return "\n".join(hdr) + "\n"

def main(out):
    a = Asm(); st = Stamper(a)
    prologue(a, st)
    if O_.codepf:
        a("s_cmp_lg_u32 s52, 3")
        a("s_cbranch_scc1 L_nopf")
        code_prefetch(a)
        a("L_nopf:")
    a("s_cmp_lt_u32 s52, 4")
    a("s_cbranch_scc1 L_comp")
    n0 = st.n
    phase1_loader(a, st)
    st()
    n1 = st.n
    a("s_branch L_p2")
    a("L_comp:")
    st.n = n0
    phase1_comp(a, st)
    assert st.n == n1, (st.n, n1)
    phase2(a, st)
    phase3(a, st)
    if O_.stamps:
        a("s_waitcnt vmcnt(0)"); st()
        if O_.dbgt:
            a("s_memrealtime s[100:101]")
            a("s_cmp_lg_u32 s2, 40")
            a("s_cbranch_scc1 L_end")
            a("s_cmp_lg_u32 s52, 4")
            a("s_cbranch_scc1 L_end")
            srd(a, 20, 48, 256)
            a("v_mov_b32 v250, 0")
            a("s_waitcnt lgkmcnt(0)")
            a("s_sub_u32 s100, s100, s98")
            a("s_sub_u32 s101, s98, s30")
            for i in range(1, st.n): a(f"s_sub_u32 s{72+2*i}, s{72+2*i}, s72")
            for i, sg in enumerate(["s100", "s101"] + [f"s{72+2*i}" for i in range(1, st.n)]):
                a(f"v_mov_b32 v252, {sg}")
                a(f"buffer_store_dword v252, v250, s[20:23], 0 offen offset:{8+4*i}")
        else: st.flush()
    if O_.until:
        a("L_until:")
        a("s_memrealtime s[60:61]")
        a("s_waitcnt lgkmcnt(0)")
        a("s_sub_u32 s60, s60, s30")
        a(f"s_cmp_lt_u32 s60, {O_.until}")
        a("s_cbranch_scc1 L_until")
    a("L_end:")
    a("s_endpgm")
    phase2_slow(a)
    a("L_code_end:")
    body = a.text()
    check_hazards(body)
    txt = header() + "; @launch grid=(256,1,1) block=(512,1,1) lds=163840\n"
    txt += '.amdgcn_target "amdgcn-amd-amdhsa--gfx950"\n.text\n' + body
    txt += '.section .rodata,"a"\n' + kd(NAME, 256, 102)
    open(out, "w").write(txt)

if __name__ == "__main__":
    for o in sys.argv[2:]:
        if o == "st": O_.stamps = True
        elif o == "fb": O_.force_fb = True
        elif "=" in o:
            k, v = o.split("="); setattr(O_, k, int(v))
    main(sys.argv[1])
```

```python
import sys, struct
from asmlib import *

QF = 0
GO = (16 << 20) + 0x10000
KV = 4 << 20
OF = 12 << 20
FL = 16 << 20
FA = FL
FB = FL + 0x1000
FOA = FL + 0x4000
FOB = FL + 0x8000
ONES = 18 << 20
TS = 20 << 20
WS_BYTES = 24 << 20
LOG2E = 1.4426950408889634
NEGINF = 0xff800000
def f2u(x): return struct.unpack("<I", struct.pack("<f", x))[0]
NAME = "gated_mix__mha_block__sliding_block__prompt_kernel"

class Opt:
    stamps = False; force_fb = False; prio = True; codepf = True; pubz = 20; D = 4; wopf = True; bE = 4; bL = 3; pr1 = 2; pr0 = 1; shp = 1; slp = 2; hold = 1; tlb = 0; pubo = 3; outf = 2; dbgt = 0; xtra = 0; until = 0; early = 0; ldpos = 0; evst = 0; cntdma = 1; rsh = 0; sent = 1; slp2 = 1
O_ = Opt()
sc = "sc1"

GW_LDS = 153600
MERGE_LDS = 131072; MBLK = 2176
CTL = 163840 - 64
SPIN = 1 << 18

class Stamper:
    def __init__(self, a): self.a = a; self.n = 0; self.kid = 0
    def at(self, i):
        if not (O_.stamps and O_.evst): return
        self.a(f"s_memtime s[{72+2*i}:{73+2*i}]")
        self.a("s_waitcnt lgkmcnt(0)")
    def __call__(self):
        if not O_.stamps: return
        if O_.evst and self.n > 0:
            self.n = 13; return
        assert self.n < 13
        self.a(f"s_memtime s[{72+2*self.n}:{73+2*self.n}]")
        if self.n == 0: self.a("s_memrealtime s[98:99]")
        self.a("s_waitcnt lgkmcnt(0)")
        if O_.evst:
            for i in range(1, 13): self.a(f"s_mov_b32 s{72+2*i}, s72")
        self.n += 1
    def flush(self):
        if not O_.stamps: return
        a = self.a
        a("s_memrealtime s[100:101]")
        a("s_lshl_b32 s62, s2, 3")
        a("s_add_u32 s62, s62, s52")
        a("s_lshl_b32 s62, s62, 6")
        a(f"s_add_u32 s62, s62, {TS}")
        a("v_mov_b32 v250, 0")
        a("s_waitcnt lgkmcnt(0)")
        for i, sg in enumerate([f"s{72+2*i}" for i in range(self.n)] + ["-1"]*(13-self.n) + [str(self.n), "s98", "s100"]):
            a(f"v_mov_b32 v252, {sg}")
            a(f"buffer_store_dword v252, v250, s[16:19], s62 offen offset:{4*i}")
        a("s_waitcnt vmcnt(0)")

class VM:
    def __init__(self, a): self.a = a; self.q = []; self.done = 0
    def issue(self, tag): self.q.append(tag)
    def wait(self, tag):
        last = max(i for i, t in enumerate(self.q) if t == tag)
        if last + 1 > self.done:
            self.done = last + 1
            n = len(self.q) - last - 1
            assert n < 64
            self.a(f"s_waitcnt vmcnt({n})")

def lds_count(a, cnt_off, target=None, flag_soff_code=None, inc=1):
    a(f"v_mov_b32 v250, {CTL}")
    a(f"v_mov_b32 v251, {inc}")
    a("s_mov_b64 exec, 1")
    if flag_soff_code is None:
        a(f"ds_add_u32 v250, v251 offset:{cnt_off}")
    else:
        lab = a.label("pub")
        a(f"ds_add_rtn_u32 v251, v250, v251 offset:{cnt_off}")
        a("v_mov_b32 v252, s30")
        a("v_mov_b32 v253, s31")
        a("s_waitcnt lgkmcnt(0)")
        a("v_readfirstlane_b32 s59, v251")
        a("v_mov_b32 v250, 0")
        a("s_and_b32 s59, s59, 0xff")
        a(f"s_cmp_lg_u32 s59, {target-1}")
        a(f"s_cbranch_scc1 {lab}")
        flag_soff_code()
        a("buffer_store_dwordx2 v[252:253], v250, s[16:19], s59 offen sc1")
        a(f"{lab}:")
    a("s_mov_b64 exec, -1")

def lds_wait(a, cnt_off, target, four=False):
    lab = a.label("lw")
    if four:
        a("v_and_b32 v250, 3, v1")
        a("v_lshlrev_b32 v250, 2, v250")
        a(f"v_add_u32 v250, {CTL}, v250")
    else:
        a(f"v_mov_b32 v250, {CTL}")
    a(f"s_mov_b32 s59, {SPIN*4}")
    a(f"{lab}:")
    a(f"ds_read_b32 v251, v250 offset:{cnt_off}")
    a("s_waitcnt lgkmcnt(0)")
    a(f"v_cmp_gt_u32 vcc, {target}, v251")
    a(f"s_cbranch_vccz {lab}_ok")
    a("s_sleep 1")
    a("s_sub_u32 s59, s59, 1")
    a("s_cmp_lg_u32 s59, 0")
    a(f"s_cbranch_scc1 {lab}")
    a(f"{lab}_ok:")

def poll_shared(a, mask, soff, word, wave):
    lab = a.label("ps")
    a(f"s_cmp_lg_u32 s52, {wave}")
    a(f"s_cbranch_scc1 {lab}_w")
    poll_flags(a, mask, soff)
    lds_count(a, word)
    a(f"s_branch {lab}_d")
    a(f"{lab}_w:")
    lds_wait(a, word, 1)
    a(f"{lab}_d:")

def poll_flags(a, mask, soff, clamp=None):
    lab = a.label("poll")
    a(f"v_and_b32 v250, {mask}, v1")
    if clamp:
        a(f"v_max_u32 v250, {clamp[0]}, v250")
        a(f"v_min_u32 v250, {clamp[1]}, v250")
    a("v_lshlrev_b32 v250, 3, v250")
    a(f"s_mov_b32 s59, {SPIN}")
    a(f"{lab}:")
    a(f"buffer_load_dwordx2 v[252:253], v250, s[16:19], {soff} offen sc1")
    a("s_waitcnt vmcnt(0)")
    a("v_cmp_ne_u64 vcc, s[30:31], v[252:253]")
    a(f"s_cbranch_vccz {lab}_ok")
    a(f"s_sleep {O_.slp}")
    a("s_sub_u32 s59, s59, 1")
    a("s_cmp_lg_u32 s59, 0")
    a(f"s_cbranch_scc1 {lab}")
    a(f"{lab}_ok:")

def tag_issue(a):
    a("v_mov_b32 v249, 0")
    a("buffer_load_dwordx2 v[254:255], v249, s[20:23], 0 offen sc1")
def tag_finish(a):
    lab = a.label("tag")
    a(f"s_mov_b32 s59, {SPIN}")
    a(f"{lab}:")
    a("v_cmp_eq_u32 vcc, 0, v255")
    a(f"s_cbranch_vccz {lab}_ok")
    a("s_sleep 1")
    a("buffer_load_dwordx2 v[254:255], v249, s[20:23], 0 offen sc1")
    a("s_waitcnt vmcnt(0)")
    a("s_sub_u32 s59, s59, 1")
    a("s_cmp_lg_u32 s59, 0")
    a(f"s_cbranch_scc1 {lab}")
    a(f"{lab}_ok:")
    a("v_readfirstlane_b32 s30, v254")
    a("v_readfirstlane_b32 s31, v255")

def flagoff(a, base):
    def f():
        a("s_lshl_b32 s59, s55, 8")
        a("s_lshl_b32 s60, s3, 3")
        a("s_add_u32 s59, s59, s60")
        a(f"s_add_u32 s59, s59, {base}")
    return f

XS = 16; WR = 144; ACC = [176, 192, 208, 224]; GR = 240

def prologue(a, st):
    a(f".globl {NAME}\n.p2align 8\n.type {NAME},@function\n{NAME}:")
    if O_.early: a("s_memrealtime s[96:97]")
    a("s_cmp_ge_u32 s2, 256")
    a("s_cbranch_scc1 L_end")
    a("s_load_dwordx16 s[32:47], s[0:1], 0")
    a("s_load_dwordx4 s[48:51], s[0:1], 64")
    a("v_lshrrev_b32 v2, 6, v0")
    a("v_and_b32 v1, 63, v0")
    a("v_readfirstlane_b32 s52, v2")
    a("v_lshlrev_b32 v2, 4, v1")
    a("s_and_b32 s53, s2, 7")
    a("s_lshr_b32 s54, s2, 3")
    st()
    a("s_and_b32 s55, s53, 1")
    a("s_lshl_b32 s55, s55, 2")
    a("s_and_b32 s56, s54, 3")
    a("s_add_u32 s55, s55, s56")
    a("s_lshr_b32 s56, s53, 1")
    a("s_lshl_b32 s56, s56, 2")
    a("s_bfe_u32 s57, s54, 0x20002")
    a("s_add_u32 s56, s56, s57")
    a("s_lshr_b32 s57, s54, 4")
    a("s_lshl_b32 s3, s56, 1")
    a("s_add_u32 s3, s3, s57")
    a("s_lshl_b32 s58, s55, 1")
    a("s_add_u32 s58, s58, s3")
    a("s_and_b32 s58, s58, 7")
    a("s_and_b32 s68, s52, 3")

def phase1_loader(a, st):
    a("v_lshrrev_b32 v5, 3, v1")
    a("s_lshl_b32 s59, s68, 3")
    a("v_add_u32 v5, s59, v5")
    a("v_and_b32 v7, 7, v1")
    a("v_bfe_u32 v6, v5, 1, 3")
    a("v_xor_b32 v6, v6, v7")
    a("v_lshlrev_b32 v3, 10, v5")
    a("v_lshl_add_u32 v3, v6, 4, v3")
    a("s_lshl_b32 s59, s56, 17")
    a("v_add_u32 v3, s59, v3")
    a("v_mul_u32_u24 v4, 3072, v5")
    a("v_bfe_u32 v6, v1, 4, 1")
    a("v_lshlrev_b32 v6, 2, v6")
    a("v_xor_b32 v6, v6, v7")
    a("v_lshl_add_u32 v4, v6, 4, v4")
    a("s_lshl_b32 s59, s55, 7")
    a("v_add_u32 v4, s59, v4")
    a("s_lshl_b32 s59, s57, 10")
    a("s_add_u32 s59, s59, 1024")
    a("v_add_u32 v9, s59, v4")
    a("v_mov_b32 v248, 0")
    a("s_lshl_b32 s71, s68, 10")
    a("s_mov_b32 s60, s58")
    a("s_mov_b32 s63, 0")
    a("s_cmp_lg_u32 s57, 0")
    a("s_waitcnt lgkmcnt(0)")
    a("s_cselect_b32 s24, s40, s34")
    a("s_cselect_b32 s25, s41, s35")
    a(f"s_mov_b32 s26, {hex(512*1536*2)}")
    a("s_mov_b32 s27, 0x00020000")
    srd(a, 8, 34, 512*1536*2)
    srd(a, 4, 32, 2 << 20)
    a("L_ld_loop:")
    a("s_lshl_b32 s61, s60, 7")
    a(f"s_mul_i32 s62, s60, {64*3072}")
    for i in range(2):
        a(f"s_add_u32 m0, s71, {16384 + i*4096}")
        a(f"s_add_u32 s70, s62, {i*32*3072}")
        a("buffer_load_dwordx4 v9, s[8:11], s70 offen lds")
        a(f"s_add_u32 m0, s71, {24576 + i*4096}")
        a("s_nop 0")
        a("buffer_load_dwordx4 v4, s[24:27], s70 offen lds")
    for i in range(4):
        a(f"s_add_u32 m0, s71, {i*4096}")
        a(f"s_add_u32 s70, s61, {i*32768}")
        a("buffer_load_dwordx4 v3, s[4:7], s70 offen lds")
    a("s_add_u32 s60, s60, 1")
    a("s_and_b32 s60, s60, 7")
    a("s_add_u32 s71, s71, 32768")
    a("s_and_b32 s71, s71, 0x1ffff")
    a("s_add_u32 s63, s63, 1")
    a("s_cmp_eq_u32 s63, 1")
    a("s_cbranch_scc1 L_ld_loop")
    a("s_waitcnt vmcnt(8)")
    a("s_barrier")
    a("s_cmp_lt_u32 s63, 8")
    a("s_cbranch_scc1 L_ld_loop")
    srd(a, 12, 40, 512*1536*2)
    srd(a, 16, 50, WS_BYTES)
    srd(a, 20, 48, 256)
    def kvb(j):
        a(f"s_mul_i32 s62, s60, {64*3072}")
        for i in range(2):
            a(f"s_add_u32 m0, s71, {j*8192 + i*4096}")
            a(f"s_add_u32 s70, s62, {i*32*3072}")
            a("buffer_load_dwordx4 v9, s[12:15], s70 offen lds")
        a("s_add_u32 s60, s60, 1")
        a("s_and_b32 s60, s60, 7")
    for j in range(4): kvb(j)
    a("s_lshl_b32 s59, s68, 2")
    a(f"s_add_u32 s59, s59, {CTL + 16}")
    a("v_mov_b32 v10, s59")
    a("s_waitcnt vmcnt(8)")
    a("s_barrier")
    st()
    if O_.hold == 2:
        a("s_waitcnt vmcnt(0)")
        a("v_mov_b32 v11, 1")
        a("ds_write_b32 v10, v11")
    if O_.hold: lds_wait(a, 4 if O_.hold < 3 else 0, 4)
    for j in range(4, 8): kvb(j)
    a("s_waitcnt vmcnt(8)")
    tag_issue(a)
    a("v_mov_b32 v11, 1")
    a("ds_write_b32 v10, v11")
    st(); st()

def code_prefetch(a):
    a("s_getpc_b64 s[28:29]")
    a("L_pcref:")
    a("s_lshl_b32 s59, s54, 10")
    a("v_lshlrev_b32 v10, 7, v1")
    a("v_add_u32 v10, s59, v10")
    a("v_cmp_gt_u32 vcc, L_code_end-L_pcref, v10")
    a("s_and_b64 vcc, vcc, 0xff")
    a("v_mov_b32 v11, s29")
    a("s_and_saveexec_b64 s[26:27], vcc")
    a("s_cbranch_execz L_pf_skip")
    a("v_add_co_u32 v10, vcc, s28, v10")
    a("s_nop 1")
    a("v_addc_co_u32 v11, vcc, 0, v11, vcc")
    a("global_load_dword v247, v[10:11], off")
    a("L_pf_skip:")
    a("s_mov_b64 exec, s[26:27]")

def comp_setup(a):
    a("s_waitcnt lgkmcnt(0)")
    srd(a, 20, 48, 256)
    a("s_cmp_lg_u32 s52, 0")
    a("s_cbranch_scc1 L_notw0")
    srd(a, 24, 44, 1024)
    a("s_lshl_b32 s59, s58, 7")
    a("v_add_u32 v5, s59, v2")
    a("v_and_b32 v5, 0x3ff, v5")
    a(f"s_mov_b32 m0, {GW_LDS}")
    a(f"v_mov_b32 v250, {CTL}")
    a("buffer_load_dwordx4 v5, s[24:27], 0 offen lds")
    for i in range(4): a(f"v_mov_b32 v{252+i}, 0")
    a("ds_write_b128 v250, v[252:255]")
    a("ds_write_b128 v250, v[252:255] offset:16")
    a("ds_write_b128 v250, v[252:255] offset:32")
    a("s_cmp_lg_u32 s2, 0")
    a("s_cbranch_scc1 L_notag")
    if O_.early: a("s_mov_b64 s[28:29], s[96:97]")
    else: a("s_memrealtime s[28:29]")
    a("s_waitcnt lgkmcnt(0)")
    a("s_or_b32 s29, s29, 0x40000000")
    a("v_mov_b32 v254, s28")
    a("v_mov_b32 v255, s29")
    a("s_mov_b64 exec, 1")
    a("buffer_store_dwordx2 v[254:255], v252, s[20:23], 0 offen sc1")
    a("s_mov_b64 exec, -1")
    a("L_notag:")
    a("s_waitcnt vmcnt(0) lgkmcnt(0)")
    a("L_notw0:")
    a("s_lshl_b32 s59, s3, 3")
    a("s_add_u32 s59, s59, s52")
    a("s_cmp_lg_u32 s59, 1")
    a("s_cbranch_scc1 L_noones")
    srd(a, 16, 50, WS_BYTES)
    a("v_lshlrev_b32 v5, 11, v1")
    for i in range(4): a(f"v_mov_b32 v{252+i}, 0x3f803f80")
    a("s_lshl_b32 s59, s55, 17")
    a(f"s_add_u32 s59, s59, {ONES}")
    a("buffer_store_dwordx4 v[252:255], v5, s[16:19], s59 offen offset:1024 sc1")
    a("buffer_store_dwordx4 v[252:255], v5, s[16:19], s59 offen offset:1536 sc1")
    a("s_nop 0")
    a("L_noones:")
    if O_.tlb:
        a("s_cmp_lg_u32 s52, 2")
        a("s_cbranch_scc1 L_notlb")
        srd(a, 16, 50, WS_BYTES)
        a("v_mul_u32_u24 v10, 0x44000, v1")
        a("buffer_load_dword v247, v10, s[16:19], 0 offen sc1")
        srd(a, 24, 46, 2 << 20)
        a("v_lshlrev_b32 v10, 18, v1")
        a("buffer_load_dword v247, v10, s[24:27], 0 offen sc1")
        a("L_notlb:")
    a("v_and_b32 v10, 31, v1")
    a("s_lshl_b32 s59, s68, 12")
    a("v_lshlrev_b32 v11, 7, v10")
    a("v_add_u32 v11, s59, v11")
    a("v_bfe_u32 v12, v1, 1, 3")
    a("v_lshrrev_b32 v13, 5, v1")
    a("v_xor_b32 v12, v12, v13")
    a("v_lshl_add_u32 v5, v12, 4, v11")
    a("v_xor_b32 v6, 32, v5")
    a("v_xor_b32 v7, 64, v5")
    a("v_xor_b32 v8, 96, v5")
    a("v_bfe_u32 v10, v1, 2, 2")
    a("v_lshl_add_u32 v10, v13, 3, v10")
    a("v_lshlrev_b32 v9, 7, v10")
    a("v_bfe_u32 v10, v1, 3, 1")
    a("v_lshl_add_u32 v9, v10, 6, v9")
    a("v_bfe_u32 v10, v1, 4, 1")
    a("v_lshl_add_u32 v9, v10, 5, v9")
    a("v_lshlrev_b32 v3, 17, v10")
    a("v_and_b32 v10, 3, v1")
    a("v_lshl_add_u32 v9, v10, 3, v9")
    a("v_xor_b32 v4, 64, v9")
    a("s_lshl_b32 s69, s55, 8")
    a("s_lshl_b32 s59, s56, 2")
    a("s_add_u32 s59, s59, s68")
    a("s_add_u32 s59, s59, s69")
    a("s_lshl_b32 s70, s59, 11")
    a("v_lshl_add_u32 v3, v13, 8, v3")
    a("v_and_b32 v10, 15, v1")
    a("v_lshl_add_u32 v3, v10, 4, v3")
    a(f"s_mov_b32 s69, {hex(f2u(0.25*LOG2E))}")
    a("v_lshlrev_b32 v0, 4, v13")
    a(f"v_add_u32 v0, {GW_LDS}, v0")
    a("v_mov_b32 v14, 0")
    a("v_mov_b32 v15, 0")
    a("s_lshr_b32 s71, s70, 1")
    srd(a, 16, 50, WS_BYTES)

def pass_a(a, par, st):
    isv = par == 1; gate = False
    def reads(z):
        j = z // 4; s_ = z % 4
        if s_ == 0:
            a("s_barrier")
            if j == 7: st()
            if j and j % 2 == 0:
                for r in (4, 5, 6, 7, 8, 9): a(f"v_xor_b32 v{r}, 0x10000, v{r}")
        so = (j & 1) * 32768
        L = [f"ds_read_b128 {vr(XS + 4*z, 4)}, v{5 + s_} offset:{so}"]
        wr = WR + 16*(z % 2)
        for m in range(4):
            o = so + 16384 + (m >> 1)*8192 + s_*2048
            L.append(f"ds_read_b64_tr_b16 {vr(wr + 4*m, 2)}, v{4 if m & 1 else 9} offset:{o}")
            L.append(f"ds_read_b64_tr_b16 {vr(wr + 4*m + 2, 2)}, v{4 if m & 1 else 9} offset:{o + 512}")
        if gate: L.append(f"ds_read_b128 {vr(GR + 4*(z % 2), 4)}, v0 offset:{z*32}")
        return L
    for x in reads(0): a(x)
    for z in range(32):
        if z == 16: tag_issue(a)
        wr = WR + 16*(z % 2); x = vr(XS + 4*z, 4)
        R = None; issued = 0
        for m in range(4):
            a(f"s_waitcnt lgkmcnt({6 - 2*m + issued})")
            w = vr(wr + 4*m, 4); v_ = isv and m < 2
            c = "0" if z == 0 else vr(ACC[m], 16)
            a(f"v_mfma_f32_32x32x16_bf16 {vr(ACC[m],16)}, {x if v_ else w}, {w if v_ else x}, {c}")
            if R is None: R = reads(z + 1) if z + 1 < 32 else []
            k = 3 if m == 0 else 2
            for y in R[:k]: a(y); issued += 1
            R = R[k:]
    a("v_xor_b32 v4, 0x10000, v4")
    a("v_xor_b32 v9, 0x10000, v9")

def pass_b(a, isv, waits, gate):
    GB4 = 208
    nr = 5 if gate else 4
    def reads(z):
        if z in waits: waits[z]()
        wr = WR + 8*(z % 4)
        L = []
        for ft in range(2):
            L.append(f"ds_read_b64_tr_b16 {vr(wr + 4*ft, 2)}, v{4 if ft else 9} offset:{z*2048}")
            L.append(f"ds_read_b64_tr_b16 {vr(wr + 4*ft + 2, 2)}, v{4 if ft else 9} offset:{z*2048 + 512}")
        if gate: L.append(f"ds_read_b128 {vr(GB4 + 4*(z % 4), 4)}, v0 offset:{z*32}")
        return L
    PF = 3
    for z in range(PF):
        for x in reads(z): a(x)
    for z in range(32):
        R = reads(z + PF) if z + PF < 32 else []
        a(f"s_waitcnt lgkmcnt({nr * (min(z + PF, 32) - z - 1)})")
        wr = WR + 8*(z % 4); x = vr(XS + 4*z, 4)
        for ft in range(2):
            w = vr(wr + 4*ft, 4)
            c = "0" if z == 0 else vr(ACC[ft], 16)
            a(f"v_mfma_f32_32x32x16_bf16 {vr(ACC[ft],16)}, {x if isv else w}, {w if isv else x}, {c}")
            if gate:
                for i in (2*ft, 2*ft+1): a(f"v_dot2c_f32_bf16 v{14 + (i & 1)}, v{XS+4*z+i}, v{GB4+4*(z%4)+i}")
            for y in (R[:2] if ft == 0 else R[2:]): a(y)

def kv_epilogue(a, isv, acc, b):
    for ft in range(2):
        c = acc[ft]
        for i in range(8): a(f"v_cvt_pk_bf16_f32 v{c+i}, v{c+2*i}, v{c+2*i+1}")
        if not isv:
            for e in range(2):
                a(f"s_add_u32 s59, s70, {KV + (b*32 + 2*ft + e)*131072}")
                a(f"buffer_store_dwordx4 {vr(c+4*e,4)}, v2, s[16:19], s59 offen {sc}")
        else:
            a(f"s_add_u32 s59, s70, {KV + (b*32 + 2*ft)*131072}")
            a(f"buffer_store_dwordx4 {vr(c,4)}, v3, s[16:19], s59 offen offset:1024 {sc}")
            a(f"buffer_store_dwordx4 {vr(c+4,4)}, v3, s[16:19], s59 offen offset:1536 {sc}")

def q_epilogue(a, b):
    for ft in range(2):
        c = ACC[2 + ft]
        for i in range(16): a(f"v_mul_f32 v{c+i}, s69, v{c+i}")
        for i in range(8): a(f"v_cvt_pk_bf16_f32 v{c+i}, v{c+2*i}, v{c+2*i+1}")
        for e in range(2):
            a(f"s_add_u32 s59, s71, {QF + (b*32 + 2*ft + e)*65536}")
            a(f"buffer_store_dwordx4 {vr(c+4*e,4)}, v2, s[16:19], s59 offen {sc}")

DKV = 92
DQ = [200, 212, 224, 236]
DADR = 248
def phase1_comp(a, st):
    comp_setup(a)
    n0 = st.n
    lw = lambda lvl: (lambda: lds_wait(a, 16, lvl, four=True))
    a("s_cmp_lg_u32 s57, 0")
    a("s_cbranch_scc1 L_p1_v")
    for par in (0, 1):
        if par: a("L_p1_v:"); st.n = n0
        pass_a(a, par, st)
        a("s_nop 7")
        kv_epilogue(a, par == 1, ACC[:2], 0)
        if par == 0: q_epilogue(a, 0)
        lds_count(a, 4)
        st()
        if par == 1:
            for ft in range(2):
                c = ACC[2 + ft]
                for i in range(16): a(f"v_mul_f32 v{c+i}, s69, v{c+i}")
                for i in range(8): a(f"v_cvt_pk_bf16_f32 v{c+i}, v{c+2*i}, v{c+2*i+1}")
        else:
            a("v_mov_b32 v10, 0")
            a("v_mov_b32 v11, 0")
            def gr(bt):
                for i in range(4): a(f"ds_read_b128 {vr(WR + 16*(bt & 1) + 4*i, 4)}, v0 offset:{(4*bt + i)*32}")
            gr(0)
            for bt in range(8):
                if bt < 7: gr(bt + 1)
                a(f"s_waitcnt lgkmcnt({4 if bt < 7 else 0})")
                for i in range(16): a(f"v_dot2c_f32_bf16 v{(14, 15, 10, 11)[i & 3]}, v{XS + 16*bt + i}, v{WR + 16*(bt & 1) + i}")
        a("s_waitcnt vmcnt(0)")
        st()
        tag_finish(a)
        lds_count(a, 0, 4, flagoff(a, FA))
        if O_.prio: a("s_setprio 3")
        pass_b(a, par == 1, {0: lw(1), 16: lw(2)}, False)
        if par == 0:
            a(f"v_and_b32 v{DADR}, 31, v1")
            a(f"v_lshlrev_b32 v{DADR}, 2, v{DADR}")
            a("v_add_f32 v10, v10, v11")
            a("v_add_f32 v14, v14, v15")
            a("v_add_f32 v14, v14, v10")
            crossop(a, "v_add_f32", 14, 15)
            a(f"v_mul_f32 v14, {hex(f2u(-LOG2E))}, v14")
            a("v_exp_f32 v14, v14")
            a("s_nop 0")
            a("v_add_f32 v14, 1.0, v14")
        else:
            a(f"v_mov_b32 v{DADR}, v3")
            for i in range(4): a(f"v_mov_b32 v{236+i}, v{228+i}")
            a("s_nop 6")
        for ft in range(2):
            for i in range(8): a(f"v_cvt_pk_bf16_f32 v{DKV+8*ft+i}, v{ACC[ft]+2*i}, v{ACC[ft]+2*i+1}")
        if par == 0: a(f"v_rcp_f32 v{DQ[0]}, v14")
        else:
            for i in range(4): a(f"v_mov_b32 v{200+i}, v{208+i}")
        if par == 0: a("s_branch L_p1_end")
    a("L_p1_end:")
    a("s_mov_b32 s0, s70")
    a("s_mov_b32 s1, s57")
    a("s_lshl_b32 s59, s56, 2")
    a("s_add_u32 s59, s59, s68")
    a("s_lshl_b32 s59, s59, 7")
    a("s_lshl_b32 s60, s55, 13")
    a("s_add_u32 s33, s59, s60")
    st()

def deferred_stores(a):
    a("s_cmp_lg_u32 s1, 0")
    a("s_cbranch_scc1 L_def_v")
    for i in range(4):
        a(f"s_add_u32 s59, s0, {KV + (32 + i)*131072}")
        a(f"buffer_store_dwordx4 {vr(DKV+4*i,4)}, v2, s[16:19], s59 offen {sc}")
    a(f"s_add_u32 s59, s33, {GO}")
    a(f"buffer_store_dword v{DQ[0]}, v{DADR}, s[16:19], s59 offen {sc}")
    a("s_branch L_def_done")
    a("L_def_v:")
    for ft in range(2):
        a(f"s_add_u32 s59, s0, {KV + (32 + 2*ft)*131072}")
        a(f"buffer_store_dwordx4 {vr(DKV+8*ft,4)}, v{DADR}, s[16:19], s59 offen offset:1024 {sc}")
        a(f"buffer_store_dwordx4 {vr(DKV+8*ft+4,4)}, v{DADR}, s[16:19], s59 offen offset:1536 {sc}")
    a("s_lshr_b32 s60, s0, 1")
    for i in range(4):
        a(f"s_add_u32 s59, s60, {QF + (32 + i)*65536}")
        a(f"buffer_store_dwordx4 {vr(DQ[i],4)}, v2, s[16:19], s59 offen {sc}")
    a("L_def_done:")

Q0 = 8; Q1 = 12; QB = 16
SB = [20, 36]; P = 52; OA = [60, 76]; OB = 92; CD = 108; CR = 124
GA = 142; GB_ = 143; VK = 144; VV = 145; NI = 146; MX = 148; VKB = 149; VVB = 150; T0_ = 151; T1_ = 5; VMG = 6; VWO = 7
KVA = [152 + 12*i for i in range(4)]; KVB = [200 + 12*i for i in range(4)]

def kv_list(buf, vk, vv, soff, off):
    return [f"buffer_load_dwordx4 {vr(buf,4)}, v{vk}, s[16:19], {soff} offen offset:{off} {sc}",
            f"buffer_load_dwordx4 {vr(buf+4,4)}, v{vv}, s[16:19], {soff} offen offset:{off+1024} {sc}",
            f"buffer_load_dwordx4 {vr(buf+8,4)}, v{vv}, s[16:19], {soff} offen offset:{off+1536} {sc}"]
def kv_loads(a, buf, vk, vv, soff, off):
    for x in kv_list(buf, vk, vv, soff, off): a(x)

def tstep(a, S, Sn, pv1, qk, pv0, s0=(), s1=(), s2=(), before_qk=None):
    def E(i): a(f"v_exp_f32 v{S+i}, v{S+i}")
    def C(i): a(f"v_cvt_pk_bf16_f32 v{P+i}, v{S+2*i}, v{S+2*i+1}")
    E(0); E(1)
    if pv1: a(f"v_mfma_f32_32x32x16_bf16 {vr(pv1[0],16)}, {vr(pv1[1],4)}, {vr(P+4,4)}, {vr(pv1[0],16)}")
    for x in s0: a(x)
    E(2); E(3); C(0); E(4); E(5); C(1)
    if before_qk: before_qk()
    if qk: a(f"v_mfma_f32_32x32x16_bf16 {vr(Sn,16)}, {vr(qk[0],4)}, {vr(qk[1],4)}, {vr(qk[2],16) if qk[2] else 0}")
    for x in s1: a(x)
    E(6); E(7); C(2); E(8); E(9); C(3); E(10); E(11)
    a(f"v_mfma_f32_32x32x16_bf16 {vr(pv0[0],16)}, {vr(pv0[1],4)}, {vr(P,4)}, {'0' if pv0[2] else vr(pv0[0],16)}")
    for x in s2: a(x)
    C(4); E(12); E(13); C(5); E(14); E(15); C(6); C(7)

def finalize(a, O, gate, flag_sgpr, fb_label, sofs, clean=False):
    a(f"v_rcp_f32 v{T0_}, v{O+8}")
    a(f"v_cmp_gt_f32 s[60:61], s26, v{O+8}")
    a(f"v_cmp_lt_f32 vcc, {hex(f2u(2.0**-64))}, v{O+8}")
    a(f"v_mul_f32 v{T0_}, v{gate}, v{T0_}")
    for i in range(8): a(f"v_mul_f32 v{O+i}, v{T0_}, v{O+i}")
    a(f"v_add_f32 v{T1_}, |v{O}|, |v{O+1}|")
    for i in range(2, 8): a(f"v_add_f32 v{T1_}, v{T1_}, |v{O+i}|")
    a(f"v_cmp_gt_f32 s[62:63], s27, v{T1_}")
    for i in range(4): a(f"v_cvt_pk_bf16_f32 v{O+12+i}, v{O+2*i}, v{O+2*i+1}")
    if clean:
        for i in range(4): a(f"v_min_u32 v{O+12+i}, -2, v{O+12+i}")
    a("s_and_b64 s[60:61], s[60:61], vcc")
    a("s_and_b64 s[60:61], s[60:61], s[62:63]")
    a("s_cmp_eq_u64 s[60:61], -1")
    a(f"s_cselect_b32 s60, 1, {flag_sgpr}")
    a("s_cmp_eq_u32 s60, 0")
    a(f"s_cbranch_scc1 {fb_label}")
    a(f"buffer_store_dwordx4 {vr(O+12,4)}, v2, s[16:19], {sofs} offen {sc}")

def crossop(a, op, reg, tmp):
    a(f"v_mov_b32 v{tmp}, v{reg}")
    a("s_nop 1")
    a(f"v_permlane32_swap_b32 v{reg}, v{tmp}")
    a("s_nop 1")
    a(f"{op} v{reg}, v{reg}, v{tmp}")

def p3_roles(a):
    a("s_lshl_b32 s15, s53, 2")
    a("s_and_b32 s59, s54, 3")
    a("s_add_u32 s15, s15, s59")
    a("s_lshr_b32 s12, s54, 2")
    a("s_and_b32 s13, s52, 1")
    a("s_lshr_b32 s14, s52, 1")
    a("s_lshl_b32 s32, s15, 1")
    a("s_add_u32 s32, s32, s13")
    srd(a, 4, 36, 512*512*2)
    srd(a, 8, 42, 512*512*2)
    a("s_lshl_b32 s38, s14, 17")
    a("s_lshl_b32 s59, s13, 13")
    a("s_add_u32 s38, s38, s59")
    a("s_lshl_b32 s59, s12, 7")
    a("s_add_u32 s38, s38, s59")
    a("s_lshl_b32 s39, s14, 14")
    a("s_lshl_b32 s59, s13, 10")
    a("s_add_u32 s39, s39, s59")
    a(f"v_lshrrev_b32 v{T0_}, 3, v1")
    a(f"v_lshlrev_b32 v{VWO}, 10, v{T0_}")
    a(f"v_bfe_u32 v{T0_}, v1, 4, 1")
    a(f"v_lshlrev_b32 v{T0_}, 2, v{T0_}")
    a(f"v_and_b32 v{T1_}, 7, v1")
    a(f"v_xor_b32 v{T0_}, v{T0_}, v{T1_}")
    a(f"v_lshl_add_u32 v{VWO}, v{T0_}, 4, v{VWO}")
    a(f"v_add_u32 v{VWO}, s38, v{VWO}")
    a("s_lshl_b32 s38, s12, 14")
    a("s_mov_b32 s35, s38")

def wo_dma(a, i):
    a(f"s_add_u32 s59, s12, {i}")
    a("s_and_b32 s59, s59, 7")
    a("s_lshl_b32 s59, s59, 14")
    a(f"s_add_u32 m0, s39, {i*2048}")
    a("s_add_u32 s59, s59, s38")
    a(f"buffer_load_dwordx4 v{VWO}, s[8:11], s59 offen lds")
    a(f"s_add_u32 m0, s39, {65536 + i*2048}")
    a("s_nop 0")
    a(f"buffer_load_dwordx4 v{VWO}, s[4:7], s59 offen lds")

def o_loads(a, dst, b):
    a("s_lshl_b32 s63, s14, 19")
    a("s_lshl_b32 s59, s32, 10")
    a("s_add_u32 s63, s63, s59")
    a(f"s_add_u32 s63, s63, {OF + b*32*65536}")
    for i in range(8):
        a(f"s_add_u32 s59, s12, {i}")
        a("s_and_b32 s59, s59, 7")
        a("s_lshl_b32 s59, s59, 16")
        a("s_add_u32 s59, s59, s63")
        a(f"buffer_load_dwordx4 {vr(dst+4*i,4)}, v2, s[16:19], s59 offen {sc}")

def wave_flag(a, base):
    a("s_lshl_b32 s59, s58, 8")
    a("s_lshl_b32 s60, s69, 3")
    a("s_add_u32 s59, s59, s60")
    a(f"s_add_u32 s59, s59, {base}")
    a("v_mov_b32 v250, 0")
    a("v_mov_b32 v252, s30")
    a("v_mov_b32 v253, s31")
    a("s_mov_b64 exec, 1")
    a("buffer_store_dwordx2 v[252:253], v250, s[16:19], s59 offen sc1")
    a("s_mov_b64 exec, -1")

def o_poll(a, base):
    a("s_lshl_b32 s60, s32, 8")
    a("s_lshl_b32 s61, s14, 6")
    a("s_add_u32 s60, s60, s61")
    a(f"s_add_u32 s60, s60, {base}")
    poll_flags(a, 7, "s60")

OFB = 200
def phase2(a, st):
    D = 4
    a("L_p2:")
    a("s_lshl_b32 s56, s53, 2")
    a("s_add_u32 s69, s68, s56")
    a("s_lshr_b32 s56, s52, 2")
    a("s_lshl_b32 s57, s54, 1")
    a("s_add_u32 s58, s57, s56")
    a("s_lshl_b32 s59, s69, 6")
    a("s_add_u32 s65, s59, s58")
    a("s_lshl_b32 s65, s65, 10")
    a("s_add_u32 s64, s59, s57")
    a("s_lshl_b32 s64, s64, 10")
    a("s_mov_b32 s24, 0x0000ffff")
    a("s_mov_b32 s25, 0x0000ffff")
    a("s_lshl_b32 s60, s69, 17")
    a(f"s_add_u32 s60, s60, {KV}")
    a(f"v_add_u32 v{VK}, s60, v2")
    a(f"v_lshrrev_b32 v{T0_}, 5, v1")
    a(f"v_lshlrev_b32 v{T0_}, 8, v{T0_}")
    a(f"v_and_b32 v{T1_}, 15, v1")
    a(f"v_lshl_add_u32 v3, v{T1_}, 4, v{T0_}")
    a(f"v_add_u32 v{VV}, s60, v3")
    a(f"s_add_u32 s60, s60, {32*131072}")
    a(f"v_add_u32 v{VKB}, s60, v2")
    a(f"v_add_u32 v{VVB}, s60, v3")
    a("s_mov_b32 s60, 0x00110000")
    a("s_mov_b32 s61, 0x00110000")
    a("s_lshl_b32 s59, s53, 17")
    a(f"s_add_u32 s59, s59, {ONES}")
    a(f"v_mov_b32 v{MX}, s59")
    a(f"v_mov_b32 v{T0_}, 0x7f000000")
    a(f"v_cndmask_b32 v{MX}, v{T0_}, v{MX}, s[60:61]")
    a(f"v_cndmask_b32 v{VV}, v{MX}, v{VV}, s[24:25]")
    a(f"v_cndmask_b32 v{VVB}, v{MX}, v{VVB}, s[24:25]")
    a(f"s_lshl_b32 s66, s54, {12 + O_.rsh}")
    a("s_and_b32 s66, s66, 0xffff")
    a("s_lshl_b32 s60, s56, 16")
    a("s_add_u32 s66, s66, s60")
    a("s_and_b32 s66, s66, 0x1ffff")
    def rest_setup():
        p3_roles(a)
        for i in range(4): a(f"v_mov_b32 v{KVA[3]+8+i}, 0")
        a(f"s_mov_b32 s26, {hex(f2u(2.0**64) if not O_.force_fb else f2u(2.0**-70))}")
        a("s_mov_b32 s27, 0x7f800000")
        a("s_mov_b32 s28, 0")
        a("s_mov_b32 s29, 0")
        a(f"v_mov_b32 v{NI}, {hex(NEGINF)}")
        for r in range(16): a(f"v_mov_b32 v{OA[0]+r}, 0")
        for r in range(16): a(f"v_mov_b32 v{OA[1]+r}, 0")
        for r in range(4): a(f"v_mov_b32 v{P+4+r}, 0")
        a("s_cmp_ge_u32 s58, 8")
        a("s_cselect_b64 s[60:61], -1, 0")
        a(f"v_cndmask_b32 v{T0_}, v{NI}, 0, s[60:61]")
        for r in range(16):
            i0 = 8*(r >> 2) + (r & 3)
            sp = 60 + 2*(r & 1)
            a(f"s_mov_b32 s{sp}, {hex((0xffffffff << i0) & 0xffffffff)}")
            a(f"s_mov_b32 s{sp+1}, {hex((0xffffffff << (i0+4)) & 0xffffffff)}")
            a(f"v_cndmask_b32 v{CD+r}, v{NI}, 0, s[{sp}:{sp+1}]")
            a(f"v_cndmask_b32 v{CR+r}, v{T0_}, v{NI}, s[{sp}:{sp+1}]")
        a(f"s_mov_b32 s67, {8 + O_.xtra}")
        a("s_cmp_lg_u32 s56, 0")
        a("s_cselect_b32 s70, 9, 7")
        a("s_and_b32 s59, s68, 1")
        a(f"s_sub_u32 s71, {7 + O_.xtra}, s59")
    def first_loads():
        a(f"buffer_load_dwordx4 {vr(Q0,4)}, v2, s[16:19], s64 offen {sc}")
        for n in range(D - 1):
            if n and n % 2 == 0:
                a("s_add_u32 s66, s66, 4096")
                a("s_and_b32 s66, s66, 0x1ffff")
            kv_loads(a, KVA[n], VK, VV, "s66", 2048 * (n % 2))
            if n == 0: a(f"buffer_load_dwordx4 {vr(Q1,4)}, v2, s[16:19], s64 offen offset:1024 {sc}")
    a("s_cmp_eq_u32 s56, 0")
    a("s_cbranch_scc1 L_p2_late")
    n0 = st.n
    rest_setup()
    a("s_waitcnt vmcnt(0)")
    a("v_mov_b32 v11, 2")
    a("ds_write_b32 v10, v11")
    tag_finish(a)
    a("s_lshl_b32 s60, s53, 8")
    a(f"s_add_u32 s60, s60, {FA}")
    st()
    poll_shared(a, 31, "s60", 36, 4)
    st()
    first_loads()
    if O_.prio: a("s_setprio 3")
    a(f"s_waitcnt vmcnt({3*(D-2)})")
    a("s_branch L_A_go")
    a("L_p2_late:")
    st.n = n0
    st()
    lds_wait(a, 36, 1)
    st()
    first_loads()
    rest_setup()
    a(f"s_waitcnt vmcnt({3*(D-2)})")
    a("L_A_go:")
    st(); st.at(1)
    a("L_A_resume:")
    a(f"v_mfma_f32_32x32x16_bf16 {vr(SB[0],16)}, {vr(KVA[0],4)}, {vr(Q0,4)}, 0")
    a("s_nop 11")
    a(".p2align 3")
    a("L_A_loop:")
    for n in range(D):
        cur = KVA[n]; prv = KVA[(n-1) % D]; nx = KVA[(n+1) % D]
        L = kv_list(prv, VK, VV, "s66", 2048 * ((n + D - 1) % 2))
        if n in (0, 2): x4, x5 = ["s_add_u32 s66, s66, 4096"], ["s_and_b32 s66, s66, 0x1ffff"]
        elif n == 3: x4, x5 = ["s_sub_u32 s67, s67, 1"], ["s_cmp_lg_u32 s67, s71"]
        else: x4, x5 = [], []
        tstep(a, SB[0], SB[1], (OA[1], prv+8), (cur, Q1, None), (OA[0], cur+4, False), s0=L[:1], s1=L[1:2], s2=L[2:])
        tstep(a, SB[1], SB[0], (OA[0], cur+8), (nx, Q0, None), (OA[1], cur+4, False), s0=[f"s_waitcnt vmcnt({3*(D-2)})"], s1=x4, s2=x5)
    a("s_cbranch_scc1 L_A_loop")
    for k in (2, 3, 4, 5, 6, 7, 8, 9):
        a(f"s_cmp_eq_u32 s70, {k}")
        a(f"s_cbranch_scc1 L_ev{k}")
    st.at(5)
    a("s_lshl_b32 s60, s53, 8")
    a(f"s_add_u32 s60, s60, {FB}")
    a("s_sub_i32 s61, s58, 8")
    a("s_max_i32 s61, s61, 0")
    a("s_lshr_b32 s61, s61, 2")
    a("s_lshl_b32 s61, s61, 1")
    a("s_lshr_b32 s62, s58, 1")
    a("s_or_b32 s62, s62, 1")
    poll_flags(a, 31, "s60", clamp=("s61", "s62"))
    a(f"s_add_u32 s60, s65, {QF + 32*65536}")
    a(f"buffer_load_dwordx4 {vr(QB,4)}, v2, s[16:19], s60 offen {sc}")
    a(f"v_and_b32 v{T0_}, 31, v1")
    a(f"v_lshlrev_b32 v{T0_}, 2, v{T0_}")
    a("s_lshl_b32 s60, s58, 7")
    a("s_lshl_b32 s61, s53, 13")
    a("s_add_u32 s60, s60, s61")
    a(f"s_add_u32 s60, s60, {GO}")
    a(f"buffer_load_dword v{GA}, v{T0_}, s[16:19], s60 offen {sc}")
    if O_.sent:
        for i in range(4): a(f"v_mov_b32 v{252+i}, -1")
        a(f"s_add_u32 s60, s65, {OF}")
        a(f"buffer_store_dwordx4 v[252:255], v2, s[16:19], s60 offen {sc}")
    a("s_lshl_b32 s34, s58, 11")
    for n in range(4):
        kv_loads(a, KVB[n], VKB, VVB, "s34", 0)
        a("s_sub_i32 s34, s34, 2048")
        a("s_max_i32 s34, s34, 0")
    lds_wait(a, 8, 4)
    st.at(6)
    a("s_mov_b32 s70, 2")
    a("s_sub_u32 s71, s71, 1")
    a("s_branch L_A_loop")
    a("L_ev2:")
    st.at(7)
    a(f"v_mfma_f32_32x32x16_bf16 {vr(SB[0],16)}, {vr(KVB[0],4)}, {vr(QB,4)}, {vr(CD,16)}")
    a(f"v_mfma_f32_32x32x16_bf16 {vr(OA[1],16)}, {vr(KVA[D-1]+8,4)}, {vr(P+4,4)}, {vr(OA[1],16)}")
    a(f"v_sub_f32 v{GB_}, 1.0, v{GA}")
    a("s_nop 9")
    rare = []
    for n in range(9):
        i = 8 - n
        cur = KVB[n % 4]; prv = KVB[(n-1) % 4]; nx = KVB[(n+1) % 4]
        lb = a.label("bmask")
        s0 = []; s1 = []; s2 = []
        if n + 1 >= 4 and n + 1 <= 8:
            s0.append(f"s_waitcnt vmcnt({(3 if n + 2 <= 8 else 0) + (4 if O_.cntdma else 0)})")
        if 1 <= n and n + 3 <= 8:
            s0 += kv_list(prv, VKB, VVB, "s34", 0)
        def pre(i=i, lb=lb, n=n, nx=nx):
            if i - 1 >= 1:
                a(f"s_cbranch_scc1 {lb}")
                rare.append((lb, SB[(n+1) & 1], nx))
        if i - 1 >= 1:
            s0.append(f"s_cmp_lt_u32 s58, {9-i}")
            s1.append(f"{lb}_r:")
        if 1 <= n and n + 3 < 8:
            s1 += ["s_sub_i32 s34, s34, 2048", "s_max_i32 s34, s34, 0"]
        if n < 8:
            s2 += [f"s_add_u32 m0, s39, {n*2048}", "s_add_u32 s35, s35, 16384",
                   f"buffer_load_dwordx4 v{VWO}, s[8:11], s38 offen lds",
                   f"s_add_u32 m0, s39, {65536 + n*2048}", "s_and_b32 s35, s35, 0x1ffff",
                   f"buffer_load_dwordx4 v{VWO}, s[4:7], s38 offen lds", "s_mov_b32 s38, s35"]
        tstep(a, SB[n & 1], SB[(n+1) & 1], (OB, prv+8) if n > 0 else None,
              (nx, QB, None if i - 1 >= 1 else CR) if i >= 1 else None, (OB, cur+4, n == 0), s0=s0, s1=s1, s2=s2, before_qk=pre)
    a("s_nop 1")
    a(f"v_mfma_f32_32x32x16_bf16 {vr(OB,16)}, {vr(KVB[0]+8,4)}, {vr(P+4,4)}, {vr(OB,16)}")
    a("s_mov_b32 s70, 3")
    a("s_sub_u32 s71, s71, 1")
    a("s_nop 9")
    a("L_B_fin:")
    a(f"s_add_u32 s40, s65, {OF + 32*65536}")
    finalize(a, OB, GB_, "s28", "L_B_fb", "s40")
    for r in range(4): a(f"v_mov_b32 v{P+4+r}, 0")
    st(); st.at(8)
    a("s_branch L_A_resume")
    for lb, Sn, nx in rare:
        a(f"{lb}:")
        a(f"v_mfma_f32_32x32x16_bf16 {vr(Sn,16)}, {vr(nx,4)}, {vr(QB,4)}, {vr(CR,16)}")
        a(f"s_branch {lb}_r")
    a("L_ev3:")
    st.at(9)
    a("s_waitcnt vmcnt(0)")
    wave_flag(a, FOB)
    if O_.prio: a("s_setprio 2")
    a("s_mov_b32 s70, 4")
    a(f"s_mov_b32 s71, {O_.pr1}")
    a("s_cmp_lg_u32 s56, 0")
    a("s_cbranch_scc1 L_A_loop")
    a("L_ev4:")
    if O_.prio: a("s_setprio 1")
    a("s_mov_b32 s70, 5")
    a(f"s_mov_b32 s71, {O_.pr0}")
    a("s_branch L_A_loop")
    a("L_ev5:")
    st.at(10)
    if O_.prio: a("s_setprio 0")
    o_poll(a, FOB)
    o_loads(a, OFB, 1)
    st.at(11)
    a("s_mov_b32 s70, 6")
    a("s_mov_b32 s71, 0")
    a("s_branch L_A_loop")
    a("L_ev9:")
    a("s_mov_b32 s70, 1")
    a(f"s_mov_b32 s71, {O_.bE + 1}")
    if O_.wopf:
        a(f"v_lshlrev_b32 v{T0_}, 10, v1")
        a("s_and_b32 s59, s68, 1")
        a("s_lshl_b32 s59, s59, 18")
        a("s_lshl_b32 s60, s12, 7")
        a("s_add_u32 s59, s59, s60")
        a("s_and_b32 s60, s54, 3")
        a("s_lshl_b32 s60, s60, 16")
        a("s_add_u32 s59, s59, s60")
        a("s_cmp_lt_u32 s68, 2")
        a("s_cbranch_scc1 L_p2_woa")
        a(f"buffer_load_dword v249, v{T0_}, s[8:11], s59 offen")
        a("s_branch L_A_loop")
        a("L_p2_woa:")
        a(f"buffer_load_dword v249, v{T0_}, s[4:7], s59 offen")
    a("s_branch L_A_loop")
    a("L_ev7:")
    st.at(2)
    deferred_stores(a)
    a("s_mov_b32 s70, 8")
    a("s_sub_u32 s71, s71, 1")
    a("s_branch L_A_loop")
    a("L_ev8:")
    st.at(3)
    if O_.prio: a("s_setprio 2")
    a("s_waitcnt vmcnt(0)")
    lds_count(a, 8, 4, flagoff(a, FB))
    a("s_mov_b32 s70, 1")
    a(f"s_mov_b32 s71, {O_.bL + 1}")
    st.at(4)
    a("s_branch L_A_loop")
    a("L_ev6:")
    a(f"v_mfma_f32_32x32x16_bf16 {vr(OA[1],16)}, {vr(KVA[D-1]+8,4)}, {vr(P+4,4)}, {vr(OA[1],16)}")
    st(); st.at(12)
    a("s_xor_b32 s60, s52, 4")
    a(f"s_mul_i32 s60, s60, {MBLK}")
    a(f"s_add_u32 s60, s60, {MERGE_LDS}")
    a(f"v_add_u32 v{VMG}, s60, v2")
    a(f"v_and_b32 v{MX}, 31, v1")
    a(f"v_lshlrev_b32 v{MX}, 2, v{MX}")
    a(f"v_add_u32 v{T1_}, s60, v{MX}")
    a("s_nop 3")
    a("s_cmp_lg_u32 s56, 0")
    a("s_cbranch_scc1 L_mg1")
    a(f"ds_write_b128 v{VMG}, {vr(OA[1],4)}")
    a(f"ds_write_b128 v{VMG}, {vr(OA[1]+4,4)} offset:1024")
    a(f"ds_write_b32 v{T1_}, v{OA[1]+8} offset:2048")
    a("s_branch L_mg2")
    a("L_mg1:")
    a(f"ds_write_b128 v{VMG}, {vr(OA[0],4)}")
    a(f"ds_write_b128 v{VMG}, {vr(OA[0]+4,4)} offset:1024")
    a(f"ds_write_b32 v{T1_}, v{OA[0]+8} offset:2048")
    a("s_waitcnt lgkmcnt(0)")
    for i in range(9): a(f"v_mov_b32 v{OA[0]+i}, v{OA[1]+i}")
    for i in range(4): a(f"v_mov_b32 v{Q0+i}, v{Q1+i}")
    a("L_mg2:")
    a(f"s_mul_i32 s60, s52, {MBLK}")
    a(f"s_add_u32 s60, s60, {MERGE_LDS}")
    a(f"v_add_u32 v{VMG}, s60, v2")
    a(f"v_add_u32 v{MX}, s60, v{MX}")
    a("s_waitcnt lgkmcnt(0)")
    a("s_barrier")
    a(f"ds_read_b128 {vr(SB[0],4)}, v{VMG}")
    a(f"ds_read_b128 {vr(SB[0]+4,4)}, v{VMG} offset:1024")
    a(f"ds_read_b32 v{SB[0]+8}, v{MX} offset:2048")
    a(f"s_add_u32 s66, s65, {OF}")
    a("s_waitcnt lgkmcnt(0)")
    for i in range(9): a(f"v_add_f32 v{OA[0]+i}, v{OA[0]+i}, v{SB[0]+i}")
    a("L_A_fin:")
    finalize(a, OA[0], GA, "s29", "L_A_fb", "s66", clean=O_.sent)

def slow_softmax(a, nm, flag, Q, O, buf, vk, vv, masked, back):
    S = SB[0]
    a(f"L_{nm}_fb:")
    a(f"s_mov_b32 {flag}, 1")
    a(f"v_mov_b32 v{MX}, v{NI}")
    a("s_mov_b32 s63, 0")
    a(f"L_{nm}_pass:")
    if masked:
        a("s_sub_i32 s61, s58, 8")
        a("s_max_i32 s61, s61, 0")
    else:
        a("s_mov_b32 s61, 0")
    a(f"L_{nm}_tile:")
    a("s_lshl_b32 s62, s61, 11")
    kv_loads(a, buf, vk, vv, "s62", 0)
    a("s_waitcnt vmcnt(0)")
    if masked:
        a("s_cmp_eq_u32 s61, s58")
        a(f"s_cbranch_scc1 L_{nm}_dg")
        a("s_add_u32 s60, s61, 8")
        a("s_cmp_eq_u32 s60, s58")
        a(f"s_cbranch_scc1 L_{nm}_fr")
    a(f"v_mfma_f32_32x32x16_bf16 {vr(S,16)}, {vr(buf,4)}, {vr(Q,4)}, 0")
    if masked:
        a(f"s_branch L_{nm}_s")
        a(f"L_{nm}_dg:")
        a(f"v_mfma_f32_32x32x16_bf16 {vr(S,16)}, {vr(buf,4)}, {vr(Q,4)}, {vr(CD,16)}")
        a(f"s_branch L_{nm}_s")
        a(f"L_{nm}_fr:")
        a(f"v_mfma_f32_32x32x16_bf16 {vr(S,16)}, {vr(buf,4)}, {vr(Q,4)}, {vr(CR,16)}")
        a(f"L_{nm}_s:")
    a("s_nop 15")
    a("s_cmp_lg_u32 s63, 0")
    a(f"s_cbranch_scc1 L_{nm}_p1")
    for i in range(8): a(f"v_max3_f32 v{MX}, v{S+2*i}, v{S+2*i+1}, v{MX}")
    a(f"s_branch L_{nm}_nx")
    a(f"L_{nm}_p1:")
    for i in range(16): a(f"v_sub_f32 v{S+i}, v{S+i}, v{MX}")
    for i in range(16): a(f"v_exp_f32 v{S+i}, v{S+i}")
    a("s_nop 0")
    for i in range(8): a(f"v_cvt_pk_bf16_f32 v{P+i}, v{S+2*i}, v{S+2*i+1}")
    a("s_nop 1")
    a(f"v_mfma_f32_32x32x16_bf16 {vr(O,16)}, {vr(buf+4,4)}, {vr(P,4)}, {vr(O,16)}")
    a(f"v_mfma_f32_32x32x16_bf16 {vr(O,16)}, {vr(buf+8,4)}, {vr(P+4,4)}, {vr(O,16)}")
    a("s_nop 15")
    a(f"L_{nm}_nx:")
    a("s_add_u32 s61, s61, 1")
    a("s_cmp_le_u32 s61, s58" if masked else "s_cmp_lt_u32 s61, 64")
    a(f"s_cbranch_scc1 L_{nm}_tile")
    a("s_cmp_lg_u32 s63, 0")
    a(f"s_cbranch_scc1 {back}")
    crossop(a, "v_max_f32", MX, T0_)
    for r in range(16): a(f"v_mov_b32 v{O+r}, 0")
    a("s_mov_b32 s63, 1")
    a(f"s_branch L_{nm}_pass")

def phase2_slow(a):
    slow_softmax(a, "A", "s29", Q0, OA[0], KVA[0], VK, VV, False, "L_A_fin")
    slow_softmax(a, "B", "s28", QB, OB, KVB[0], VKB, VVB, True, "L_B_fin")

def phase3(a, st):
    OFA = 20; AC = [108, 124]; WB = [232, 240]
    a("v_lshrrev_b32 v9, 5, v1")
    a("v_bfe_u32 v10, v1, 2, 2")
    a("v_lshl_add_u32 v11, v9, 2, v10")
    a("v_lshlrev_b32 v4, 7, v11")
    a("v_and_b32 v11, 1, v1")
    a("v_lshl_add_u32 v4, v11, 5, v4")
    a("v_bfe_u32 v11, v1, 4, 1")
    a("v_lshl_add_u32 v4, v11, 4, v4")
    a("v_bfe_u32 v11, v1, 1, 1")
    a("v_lshl_add_u32 v4, v11, 3, v4")
    a("s_lshl_b32 s60, s14, 14")
    a("v_add_u32 v4, s60, v4")
    a("v_bfe_u32 v11, v1, 3, 1")
    a("v_lshlrev_b32 v11, 6, v11")
    a("v_xor_b32 v12, 64, v11")
    a("v_add_u32 v5, v4, v12")
    a("v_add_u32 v4, v4, v11")
    a("v_add_u32 v13, 0x10000, v4")
    a("v_add_u32 v14, 0x10000, v5")
    def reads(s):
        wb = WB[s & 1]; base = 4 if s < 8 else 13
        for ct in range(2):
            a(f"ds_read_b64_tr_b16 {vr(wb+4*ct,2)}, v{base+ct} offset:{(s&7)*2048}")
            a(f"ds_read_b64_tr_b16 {vr(wb+4*ct+2,2)}, v{base+ct} offset:{(s&7)*2048+1024}")
    reads(0)
    for s in range(16):
        if s == O_.pubo and O_.sent: st()
        if s == O_.pubo and not O_.sent:
            a("s_waitcnt vmcnt(0)")
            st()
            wave_flag(a, FOA)
        if s == 8:
            srd(a, 24, 46, 2 << 20)
            a(f"s_mul_i32 s64, s13, {4*6144}")
            a("v_add_u32 v6, s64, v2")
            a("s_mul_i32 s65, s14, 6144")
            a("v_add_u32 v7, s65, v6")
            a("v_and_b32 v8, 31, v1")
            a("v_lshlrev_b32 v8, 10, v8")
            a("v_lshl_add_u32 v8, v9, 5, v8")
            a("s_lshl_b32 s64, s32, 15")
            a("s_lshl_b32 s65, s12, 7")
            a("s_add_u32 s64, s64, s65")
            a("s_lshr_b32 s65, s14, 1")
            a("s_lshl_b32 s65, s65, 6")
            a("s_add_u32 s64, s64, s65")
            a("s_and_b32 s65, s14, 1")
            a("s_lshl_b32 s65, s65, 4")
            a("s_add_u32 s64, s64, s65")
            a("s_barrier")
            if not O_.sent: o_poll(a, FOA)
            st()
            o_loads(a, OFA, 0)
            a(f"s_mov_b32 s62, {SPIN}")
        if s + 1 < 16: reads(s + 1)
        if s < 8: a("s_waitcnt lgkmcnt(4)")
        else: a(f"s_waitcnt vmcnt({15 - s}) lgkmcnt({4 if s+1 < 16 else 0})")
        o = (OFB if s < 8 else OFA) + 4*(s & 7)
        if s >= 8 and O_.sent:
            a(f"L_oc{s}:")
            a(f"v_max3_u32 v15, v{o}, v{o+1}, v{o+2}")
            a(f"v_max_u32 v15, v15, v{o+3}")
            a("v_cmp_eq_u32 vcc, -1, v15")
            a(f"s_cbranch_vccnz L_or{s}")
            a(f"L_og{s}:")
        for ct in range(2):
            a(f"v_mfma_f32_32x32x16_bf16 {vr(AC[ct],16)}, {vr(WB[s&1]+4*ct,4)}, {vr(o,4)}, {'0' if s == 0 else vr(AC[ct],16)}")
    a("s_nop 6")
    for k in (1, 2, 3):
        a(f"s_cmp_eq_u32 s14, {k}")
        a(f"s_cbranch_scc1 L_red{k}")
    for k in range(4):
        if k: a(f"L_red{k}:")
        a("s_nop 3")
        for owner in range(4):
            if owner == k: continue
            slot = (k - owner - 1) & 3
            for q in range(2):
                a(f"ds_write_b128 v6, {vr(AC[owner>>1] + 8*(owner&1) + 4*q, 4)} offset:{owner*6144 + slot*2048 + q*1024}")
        for i in range(8): a(f"v_mov_b32 v{60+i}, v{AC[k>>1] + 8*(k&1) + i}")
        if k < 3: a("s_branch L_red_done")
    a("L_red_done:")
    a("s_waitcnt lgkmcnt(0)")
    a("s_barrier")
    for src in range(3):
        for q in range(2):
            a(f"ds_read_b128 {vr(68 + src*8 + 4*q, 4)}, v7 offset:{src*2048 + q*1024}")
    a("s_waitcnt lgkmcnt(4)")
    for i in range(8): a(f"v_add_f32 v{60+i}, v{60+i}, v{68+i}")
    a("s_waitcnt lgkmcnt(0)")
    for i in range(8): a(f"v_add_f32 v{76+i}, v{76+i}, v{84+i}")
    for i in range(8): a(f"v_add_f32 v{60+i}, v{60+i}, v{76+i}")
    for i in range(4): a(f"v_cvt_pk_bf16_f32 v{48+i}, v{60+2*i}, v{61+2*i}")
    a("buffer_store_dwordx4 v[48:51], v8, s[24:27], s64 offen " + ["", "sc1", "nt", "sc0 sc1"][O_.outf])

def phase3_retry(a):
    if not O_.sent: return
    for s in range(8, 16):
        a(f"L_or{s}:")
        a("s_sub_u32 s62, s62, 1")
        a("s_cmp_eq_u32 s62, 0")
        a(f"s_cbranch_scc1 L_og{s}")
        a(f"s_mov_b32 s61, {s}")
        a("s_waitcnt vmcnt(0)")
        a(f"s_sleep {O_.slp2}")
        a(f"s_branch L_rl{s}")
    for s in range(8, 16):
        o = 20 + 4*(s & 7)
        if s > 8:
            a(f"v_max3_u32 v15, v{o}, v{o+1}, v{o+2}")
            a(f"v_max_u32 v15, v15, v{o+3}")
            a("v_cmp_eq_u32 vcc, -1, v15")
            a(f"s_cbranch_vccz L_rs{s}")
        a(f"L_rl{s}:")
        a(f"s_add_u32 s59, s12, {s & 7}")
        a("s_and_b32 s59, s59, 7")
        a("s_lshl_b32 s59, s59, 16")
        a("s_add_u32 s59, s59, s63")
        a(f"buffer_load_dwordx4 {vr(o,4)}, v2, s[16:19], s59 offen {sc}")
        a(f"L_rs{s}:")
    a("s_waitcnt vmcnt(0)")
    for s in range(8, 15):
        a(f"s_cmp_eq_u32 s61, {s}")
        a(f"s_cbranch_scc1 L_oc{s}")
    a("s_branch L_oc15")

def header():
    hdr = open("gated_mix__mha_block__sliding_block__prompt.s.ref").read().split("\n")
    hdr = [l for l in hdr if l.startswith(";") and "@launch" not in l and "Override" not in l and "grid=ceil" not in l]
    return "\n".join(hdr) + "\n"

def main(out):
    a = Asm(); st = Stamper(a)
    prologue(a, st)
    if O_.codepf:
        a("s_cmp_lg_u32 s52, 3")
        a("s_cbranch_scc1 L_nopf")
        code_prefetch(a)
        a("L_nopf:")
    a("s_cmp_lt_u32 s52, 4")
    a("s_cbranch_scc1 L_comp")
    n0 = st.n
    phase1_loader(a, st)
    st()
    n1 = st.n
    a("s_branch L_p2")
    a("L_comp:")
    st.n = n0
    phase1_comp(a, st)
    assert st.n == n1, (st.n, n1)
    phase2(a, st)
    phase3(a, st)
    if O_.stamps:
        a("s_waitcnt vmcnt(0)"); st()
        if O_.dbgt:
            a("s_memrealtime s[100:101]")
            a("s_cmp_lg_u32 s2, 40")
            a("s_cbranch_scc1 L_end")
            a("s_cmp_lg_u32 s52, 4")
            a("s_cbranch_scc1 L_end")
            srd(a, 20, 48, 256)
            a("v_mov_b32 v250, 0")
            a("s_waitcnt lgkmcnt(0)")
            a("s_sub_u32 s100, s100, s98")
            a("s_sub_u32 s101, s98, s30")
            for i in range(1, st.n): a(f"s_sub_u32 s{72+2*i}, s{72+2*i}, s72")
            for i, sg in enumerate(["s100", "s101"] + [f"s{72+2*i}" for i in range(1, st.n)]):
                a(f"v_mov_b32 v252, {sg}")
                a(f"buffer_store_dword v252, v250, s[20:23], 0 offen offset:{8+4*i}")
        else: st.flush()
    if O_.until:
        a("L_until:")
        a("s_memrealtime s[60:61]")
        a("s_waitcnt lgkmcnt(0)")
        a("s_sub_u32 s60, s60, s30")
        a(f"s_cmp_lt_u32 s60, {O_.until}")
        a("s_cbranch_scc1 L_until")
    a("L_end:")
    a("s_endpgm")
    phase3_retry(a)
    phase2_slow(a)
    a("L_code_end:")
    body = a.text()
    check_hazards(body)
    txt = header() + "; @launch grid=(256,1,1) block=(512,1,1) lds=163840\n"
    txt += '.amdgcn_target "amdgcn-amd-amdhsa--gfx950"\n.text\n' + body
    txt += '.section .rodata,"a"\n' + kd(NAME, 256, 102)
    open(out, "w").write(txt)

if __name__ == "__main__":
    for o in sys.argv[2:]:
        if o == "st": O_.stamps = True
        elif o == "fb": O_.force_fb = True
        elif "=" in o:
            k, v = o.split("="); setattr(O_, k, int(v))
    main(sys.argv[1])
```
